```python
import torch

def _softmax(x, axis=-1):
    return torch.softmax(x, dim=axis)
def _gelu(x):
    return torch.nn.functional.gelu(x, approximate="tanh")
def _silu(x):
    return torch.nn.functional.silu(x)
def _sigmoid(x):
    return torch.sigmoid(x)
def _layernorm(x, axis=-1, eps=1e-5):
    m = x.mean(dim=axis, keepdim=True)
    v = x.var(dim=axis, keepdim=True, unbiased=False)
    return (x - m) / torch.sqrt(v + eps)
def _scatter_add(tgt, idx, src, axis=0):
    return tgt.clone().index_add_(axis, idx, src)
def _segment_sum(src, seg, n):
    out = torch.zeros((n,) + src.shape[1:], dtype=src.dtype)
    return out.index_add_(0, seg, src)
def _pad(x, pw):
    flat = tuple(v for pair in reversed(pw) for v in pair)
    return torch.nn.functional.pad(x, flat)

kernel_name = 'parallel_sum__sliding_local_dilated__geglu_ffn__prompt'

def setup_inputs():

    _w = (lambda a: (lambda t: t.to(torch.bfloat16) if t.is_floating_point() else t)(torch.as_tensor(a)))
    def _A_setup():
        B, S, D = 1, 2048, 1024
        return {
            "x": _w((lambda *s: torch.randn(*s, dtype=torch.bfloat16) * 0.05)(B, S, D)),
            "wqkv": _w((lambda *s: torch.randn(*s, dtype=torch.bfloat16) * 0.05)(D, 3 * D)),
            "wo": _w((lambda *s: torch.randn(*s, dtype=torch.bfloat16) * 0.05)(D, D)),
        }
    _A_in = _A_setup()

    def _B_setup():
        B, S, D, F = 1, 2048, 1024, 3584
        return {
            "x": _w((lambda *s: torch.randn(*s, dtype=torch.bfloat16) * 0.05)(B, S, D)),
            "w_gate": _w((lambda *s: torch.randn(*s, dtype=torch.bfloat16) * 0.05)(D, F)),
            "w_up": _w((lambda *s: torch.randn(*s, dtype=torch.bfloat16) * 0.05)(D, F)),
            "w_down": _w((lambda *s: torch.randn(*s, dtype=torch.bfloat16) * 0.05)(F, D)),
        }
    _B_in = _B_setup()

    return {
        "A_x": _A_in["x"],
        "A_wqkv": _A_in["wqkv"],
        "A_wo": _A_in["wo"],
        "B_x": _B_in["x"],
        "B_w_gate": _B_in["w_gate"],
        "B_w_up": _B_in["w_up"],
        "B_w_down": _B_in["w_down"],
    }

def reference(A_x, A_wqkv, A_wo, B_x, B_w_gate, B_w_up, B_w_down):
    def _A_ref(x, wqkv, wo):
        B, S, D = x.shape
        H = 32; Dh = D // H
        W, dil = 8, 2
        qkv = (lambda x, *d: x.permute(*d))((x @ wqkv).reshape(B, S, 3, H, Dh), 2, 0, 3, 1, 4)
        q, k, v = qkv[0], qkv[1], qkv[2]
        scale = Dh ** -0.5
        pos = torch.arange(S)
        off = torch.arange(W) * dil
        idx = pos[:, None] - off[None, :]
        mask = idx >= 0
        idx_c = torch.where(mask, idx, 0).reshape(-1)
        kg = k[:, :, idx_c, :].reshape(B, H, S, W, Dh)
        vg = v[:, :, idx_c, :].reshape(B, H, S, W, Dh)
        logits = torch.einsum("bhsd,bhswd->bhsw", q, kg) * scale
        logits = torch.where(mask[None, None, :, :], logits, -1e9)
        attn = _softmax(logits, axis=-1)
        o = torch.einsum("bhsw,bhswd->bhsd", attn, vg)
        return (lambda x, *d: x.permute(*d))(o, 0, 2, 1, 3).reshape(B, S, D) @ wo

    def _B_ref(x, w_gate, w_up, w_down):
        return (_gelu(x @ w_gate) * (x @ w_up)) @ w_down

    x = A_x
    xn = _layernorm(x, axis=-1)
    return x + _A_ref(xn, A_wqkv, A_wo) + _B_ref(xn, B_w_gate, B_w_up, B_w_down)
```

```python
class Asm:
    def __init__(self):
        self.l = []
    def __call__(self, s=''):
        for x in s.split('\n'):
            self.l.append(x)
    def label(self, n):
        self.l.append(n + ':')
    def c(self, s):
        self.l.append('  ; ' + s)
    def text(self):
        return '\n'.join(self.l) + '\n'

def vr(a, n=1):
    return f'v{a}' if n == 1 else f'v[{a}:{a+n-1}]'
def sr(a, n=1):
    return f's{a}' if n == 1 else f's[{a}:{a+n-1}]'

def kernel_head(a, name):
    a(f'.globl {name}')
    a('.p2align 8')
    a(f'.type {name},@function')
    a(f'{name}:')

def kernel_desc(a, name, vgpr=256, sgpr=102, accum=None):
    if accum is None:
        accum = (vgpr + 3) // 4 * 4
    a('.p2align 6')
    a(f'.amdhsa_kernel {name}')
    a(f'  .amdhsa_next_free_vgpr {vgpr}')
    a(f'  .amdhsa_next_free_sgpr {sgpr}')
    a(f'  .amdhsa_accum_offset {accum}')
    a('  .amdhsa_group_segment_fixed_size 0')
    a('  .amdhsa_kernarg_size 80')
    a('  .amdhsa_user_sgpr_count 2')
    a('  .amdhsa_user_sgpr_kernarg_segment_ptr 1')
    a('  .amdhsa_system_sgpr_workgroup_id_x 1')
    a('  .amdhsa_float_denorm_mode_32 3')
    a('.end_amdhsa_kernel')

HEADER = '''; Kernarg layout for this problem (80 bytes, ptrs only, base s[0:1]):
'''
```

```python
import re, sys

TRANS = ('v_exp_f32', 'v_log_f32', 'v_rcp_f32', 'v_rsq_f32', 'v_sqrt_f32', 'v_sin_f32', 'v_cos_f32', 'v_rcp_iflag_f32')
REG = re.compile(r'^(-|\|)?(abs\()?([vsa])(\d+|\[(\d+):(\d+)\])\)?\|?$')

def regs(tok):
    tok = tok.strip()
    if tok in ('vcc',): return {('s', 'vcc_lo'), ('s', 'vcc_hi')}
    if tok in ('vcc_lo', 'vcc_hi'): return {('s', tok)}
    if tok == 'exec': return {('s', 'exec_lo'), ('s', 'exec_hi')}
    if tok in ('exec_lo', 'exec_hi'): return {('s', tok)}
    if tok == 'm0': return {('s', 'm0')}
    m = REG.match(tok)
    if not m: return set()
    kind = m.group(3)
    if m.group(5) is not None:
        return {(kind, i) for i in range(int(m.group(5)), int(m.group(6)) + 1)}
    return {(kind, int(m.group(4)))}

class I:
    def __init__(self, line, idx):
        self.line = line; self.idx = idx
        s = line.split(';')[0].strip()
        self.label = None; self.op = None; self.defs = set(); self.uses = set(); self.toks = []
        self.srcc = set(); self.srcab = set(); self.storedata = set()
        if not s or s.startswith('.'):
            return
        if s.endswith(':'):
            self.label = s[:-1]; return
        parts = s.split(None, 1)
        op = self.op = parts[0]
        if op.endswith('_e32') or op.endswith('_e64'):
            op = self.op = op[:-4]
        rest = parts[1] if len(parts) > 1 else ''
        toks = [t.strip() for t in rest.split(',')]
        mods = ''
        if toks:
            lt = toks[-1].split()
            if lt:
                toks[-1] = lt[0]; mods = ' '.join(lt[1:])
        self.mods = mods; self.toks = toks
        R = [regs(t) for t in toks]
        allr = lambda l: set().union(*l) if l else set()
        self.valu = op.startswith('v_') and not op.startswith('v_mfma')
        self.mfma = op.startswith('v_mfma')
        self.vmem = op.startswith(('buffer_', 'global_', 'flat_'))
        self.ds = op.startswith('ds_')
        self.salu = op.startswith('s_')
        self.trans = op in TRANS
        if self.mfma:
            self.defs = R[0]; self.srcab = R[1] | R[2]; self.srcc = R[3]; self.uses = self.srcab | self.srcc
            self.passes = 8 if '32x32' in op else 4
        elif op.startswith('v_cmpx'):
            self.defs = R[0] | regs('exec'); self.uses = allr(R[1:])
        elif op.startswith('v_cmp'):
            self.defs = R[0]; self.uses = allr(R[1:])
        elif (op.startswith('v_permlane') and 'swap' in op) or op == 'v_swap_b32':
            self.defs = R[0] | R[1]; self.uses = R[0] | R[1]
        elif op in ('v_add_co_u32', 'v_sub_co_u32', 'v_addc_co_u32', 'v_subb_co_u32', 'v_subrev_co_u32', 'v_mad_u64_u32', 'v_div_scale_f32'):
            self.defs = R[0] | R[1]; self.uses = allr(R[2:])
        elif op in ('v_fmac_f32', 'v_pk_fmac_f16', 'v_writelane_b32', 'v_dot2c_f32_bf16', 'v_dot2c_f32_f16'):
            self.defs = R[0]; self.uses = allr(R)
        elif op == 'v_nop':
            pass
        elif self.valu:
            self.defs = R[0]; self.uses = allr(R[1:])
            if op == 'v_cndmask_b32' and len(toks) == 3: self.uses |= regs('vcc')
        elif self.ds:
            if op.startswith('ds_read') or op.startswith('ds_bpermute') or op.startswith('ds_permute') or op.startswith('ds_swizzle'):
                self.defs = R[0]; self.uses = allr(R[1:])
            else:
                self.uses = allr(R)
        elif self.vmem:
            islds = 'lds' in mods.split()
            self.islds = islds
            if op in ('buffer_inv', 'buffer_wbl2'):
                pass
            elif 'load' in op and not islds:
                self.defs = R[0]; self.uses = allr(R[1:])
            elif 'atomic' in op and ('sc0' in mods.split()):
                self.defs = R[0]; self.uses = allr(R)
            else:
                self.uses = allr(R)
                if islds: self.uses |= regs('m0')
            if 'store' in op or 'atomic' in op:
                if op.endswith(('x3', 'x4')):
                    self.storedata = R[0] if op.startswith('buffer') else R[1]
        elif self.salu:
            if op.startswith(('s_cmp', 's_cbranch', 's_branch', 's_waitcnt', 's_nop', 's_barrier', 's_endpgm', 's_setprio', 's_sleep', 's_bitcmp')):
                self.uses = allr(R)
            elif op.endswith('saveexec_b64'):
                self.defs = R[0] | regs('exec'); self.uses = allr(R[1:]) | regs('exec')
            elif op in ('s_setpc_b64',):
                self.uses = allr(R)
            else:
                self.defs = R[0]; self.uses = allr(R[1:])
    def ws(self):
        if self.op == 's_nop': return int(self.toks[0], 0) + 1
        return 1

def need(p, c):
    n = 0
    vdef = {r for r in p.defs if r[0] in 'va'}
    sdef = {r for r in p.defs if r[0] == 's'}
    if p.valu:
        if c.mfma and vdef & c.uses: n = max(n, 2)
        if c.op and c.op.startswith('v_permlane') and vdef & c.uses: n = max(n, 2)
        if c.op in ('v_readfirstlane_b32', 'v_readlane_b32') and vdef & c.uses: n = max(n, 1)
        if p.trans and c.valu and not c.trans and vdef & c.uses: n = max(n, 1)
        if p.trans and c.valu and c.trans and vdef & c.uses: n = max(n, 1)
        if c.valu and 'dpp' in c.line and vdef & c.uses: n = max(n, 2)
        if sdef:
            if c.valu and sdef & c.uses:
                n = max(n, 4 if c.op in ('v_readlane_b32', 'v_writelane_b32') else 2)
            if c.vmem and sdef & c.uses: n = max(n, 5)
            if (('s', 'exec_lo') in sdef) and (c.mfma): n = max(n, 4)
            if (('s', 'exec_lo') in sdef) and c.op and c.op.startswith(('v_permlane', 'v_readlane', 'v_readfirstlane', 'v_writelane')): n = max(n, 4)
    if p.mfma:
        P = p.passes
        if c.mfma:
            if vdef & c.srcab: n = max(n, {4: 8, 8: 12}[P])
            if vdef & c.srcc:
                if not (c.srcc == vdef and c.passes == P): n = max(n, {4: 6, 8: 10}[P])
        elif (c.valu or c.vmem or c.ds):
            if vdef & (c.uses | c.defs): n = max(n, {4: 8, 8: 12}[P])
        if c.valu and (p.srcc & c.defs): n = max(n, {4: 3, 8: 7}[P])
    if p.storedata and (c.valu or c.mfma) and (p.storedata & c.defs): n = max(n, 2)
    if p.storedata and (c.ds or c.vmem) and (p.storedata & c.defs): n = max(n, 1)
    if p.salu and ('s', 'm0') in sdef:
        if (c.vmem and getattr(c, 'islds', False)) or c.op in ('v_writelane_b32', 'v_readlane_b32') and ('s', 'm0') in c.uses: n = max(n, 1)
    return n

def analyse(lines):
    ins = [I(l, i) for i, l in enumerate(lines)]
    real = [x for x in ins if x.op or x.label]
    labels = {x.label: k for k, x in enumerate(real) if x.label}
    def succ(k):
        x = real[k]
        if x.op == 's_endpgm': return []
        if x.op == 's_branch': return [labels[x.toks[0]]] if x.toks[0] in labels else []
        if x.op and x.op.startswith('s_cbranch'):
            s = [k + 1] if k + 1 < len(real) else []
            if x.toks[0] in labels: s.append(labels[x.toks[0]])
            return s
        if x.op == 's_setpc_b64': return []
        return [k + 1] if k + 1 < len(real) else []
    viol = {}
    for k, p in enumerate(real):
        if not p.op: continue
        if not (p.valu or p.mfma or p.storedata or (p.salu and ('s', 'm0') in p.defs)): continue
        stack = [(s, 0) for s in succ(k)]
        seen = {}
        while stack:
            j, d = stack.pop()
            if d >= 12: continue
            if j in seen and seen[j] <= d: continue
            seen[j] = d
            c = real[j]
            if c.op:
                nn = need(p, c)
                if nn > d:
                    viol[j] = max(viol.get(j, (0, None))[0], nn - d), p.line.strip()
                    viol[j] = (viol[j][0], p.line.strip()) if isinstance(viol[j], tuple) else viol[j]
                d2 = d + c.ws()
            else:
                d2 = d
            for s in succ(j): stack.append((s, d2))
    return real, viol

def fix(text, verbose=True):
    lines = text.split('\n')
    total = 0
    for it in range(200):
        real, viol = analyse(lines)
        if not viol: break
        keep = []; last = -100
        for j in sorted(viol):
            if j - last > 14: keep.append(j); last = j
        for j in sorted(keep, key=lambda j: -real[j].idx):
            miss, prod = viol[j]
            if verbose: sys.stderr.write(f'hazard: +{miss} before line {real[j].idx+1}: {real[j].line.strip()}   <- {prod}\n')
            lines.insert(real[j].idx, f'  s_nop {miss-1}')
            total += 1
    if verbose and total: sys.stderr.write(f'hazard: inserted {total} pads\n')
    return '\n'.join(lines)

if __name__ == '__main__':
    t = open(sys.argv[1]).read()
    real, viol = analyse(t.split('\n'))
    for j in sorted(viol):
        print(f'line {real[j].idx+1}: needs +{viol[j][0]}: {real[j].line.strip()}  <- {viol[j][1]}')
    print('violations:', len(viol))
```

```python
import hazard

FENCE = ('s_waitcnt', 's_barrier', 's_cbranch', 's_branch', 's_endpgm', 's_setprio', 's_sleep')

def lat(p, c):
    if p.mfma: return 9 if not (c.mfma and c.srcc == p.defs) else 1
    if p.trans: return 4
    if p.op.startswith('v_pk_'): return 3
    if p.valu:
        if c.op and c.op.startswith('v_permlane'): return 3
        if c.mfma: return 3
        sdef = {r for r in p.defs if r[0] == 's'}
        if sdef & c.uses: return 3
        return 2
    if p.salu: return 1
    return 1

def sched_region(lines):
    ins = []
    for l in lines:
        x = hazard.I(l, 0)
        if x.op is None:
            continue
        if x.op == 's_nop': continue
        ins.append(x)
    n = len(ins)
    if n < 3: return [x.line for x in ins]
    for x in ins:
        x.d = set(x.defs); x.u = set(x.uses)
        if x.valu or x.mfma or x.vmem or x.ds: x.u |= {('s', 'exec_lo'), ('s', 'exec_hi')}
        if x.salu and not x.op.startswith(('s_mov', 's_load')):
            x.d |= {('s', 'scc')}
            if x.op.startswith(('s_addc', 's_cselect', 's_subb')): x.u |= {('s', 'scc')}
        if x.op.startswith('s_cselect'): x.u |= {('s', 'scc')}; x.d -= {('s', 'scc')}
        if x.op.startswith('v_cmp') or 'vcc' in x.line: pass
        x.mem = 'v' if x.vmem else ('d' if x.ds else None)
    succ = [[] for _ in range(n)]; npred = [0] * n
    def edge(i, j, w):
        succ[i].append((j, w)); npred[j] += 1
    for j in range(n):
        b = ins[j]
        for i in range(j - 1, -1, -1):
            a_ = ins[i]
            if a_.d & b.u: edge(i, j, lat(a_, b))
            elif a_.d & b.d: edge(i, j, lat(a_, b) if a_.mfma else 1)
            elif a_.u & b.d:
                w = 1
                if a_.storedata & b.d: w = 3
                if a_.mfma and (a_.srcc & b.d): w = 4
                edge(i, j, w)
            elif a_.mem and a_.mem == b.mem: edge(i, j, 1)
    pr = [0] * n
    for i in range(n - 1, -1, -1):
        pr[i] = max([w + pr[j] for j, w in succ[i]] + [0])
    ready_t = [0] * n
    left = npred[:]
    avail = [i for i in range(n) if left[i] == 0]
    out = []; t = 0
    while avail:
        cand = [i for i in avail if ready_t[i] <= t]
        if not cand:
            t = min(ready_t[i] for i in avail); continue
        i = max(cand, key=lambda k: (pr[k], -k))
        avail.remove(i); out.append(ins[i].line)
        cost = 2 if ins[i].trans else 1
        for j, w in succ[i]:
            ready_t[j] = max(ready_t[j], t + w)
            left[j] -= 1
            if left[j] == 0: avail.append(j)
        t += cost
    assert len(out) == n
    return out

def sched(lines):
    out = []; cur = []
    for l in lines:
        s = l.split(';')[0].strip()
        isf = s.endswith(':') or s.startswith(FENCE) or s.startswith('.') or 'exec' in s.split(',')[0]
        if isf:
            out += sched_region(cur); cur = []
            out.append(l)
        else:
            cur.append(l)
    out += sched_region(cur)
    return out
```

```python
import sys, struct
from asmlib import *
import hazard, sched

WS_XN = 0
WS_HF = 4 << 20
HF_BYTES = 144 * 128 * 1024
WS_PX = 64 << 20
WS_FLAG = 100 << 20
FLAG_G1 = 16384
WS_STAMP = 60 << 20
class O:
    stamps = 0
    pf = 1
    only = ''
    lnsleep = 8
    lntouch = 0
    w2early = 0
    earlyE = 1
    pfs = 1
    pfwait = 0
    csplain = 0
    g2map = 0
    pxplain = 0
    pf00 = 0
    first = 3
    latres = 1
    x_sameA = 0
    x_sameW = 0
    x_noA = 0
    x_noW = 0
    early = 0
    p1 = 1
    p2 = 2
    dry = 0
    hff = 0
    sched = 0
    outf = 0
    nopf = 0
    codepf = 0
    now2pf = 0
    dbgcs = 0
    inline_ln = 0
    lnpf = 0
    atsc1 = 0
    lnnopoll = 0

def stamp(a, i):
    if O.stamps:
        a('  s_memtime s[98:99]')
        a('  s_memrealtime s[96:97]')
        a('  s_waitcnt lgkmcnt(0)')
        a(f'  v_writelane_b32 v7, s98, {i}')
        a(f'  v_writelane_b32 v7, s96, {32+i}')
def stamp_real(a, i):
    if O.stamps:
        a('  s_memrealtime s[98:99]')
        a('  s_waitcnt lgkmcnt(0)')
        a(f'  v_writelane_b32 v7, s98, {i}')
def stamp_flush(a):
    if not O.stamps: return
    if O.stamps == 3:
        a('  s_cmp_lg_u32 s76, 0')
        a('  s_cbranch_scc1 L_st_skip')
        a('  s_mov_b64 s[20:21], exec')
        a('  s_mov_b64 exec, 1')
        for w, (lane, inv) in enumerate([(32, True), (32, False), (34, False), (35, False), (36, False), (37, False), (38, False), (40, False), (41, False), (42, False), (43, False)]):
            a(f'  v_readlane_b32 s12, v7, {lane}')
            a('  s_nop 3')
            if inv: a('  s_not_b32 s12, s12')
            a(f'  v_mov_b32 v2, s12')
            a(f'  v_mov_b32 v3, {16 + 4*w}')
            a(f'  buffer_atomic_umax v2, v3, s[28:31], 0 offen sc1')
        a('  s_mov_b64 exec, s[20:21]')
        a('L_st_skip:')
        return
    a(f'''  s_lshl_b32 s12, s2, 3
  s_add_u32 s12, s12, s76
  s_lshl_b32 s12, s12, 8
  s_add_u32 s12, s12, {WS_STAMP}
  s_add_u32 s16, s6, s12
  s_addc_u32 s17, s7, 0
  s_mov_b32 s18, 256
  s_mov_b32 s19, 0x20000
  v_lshlrev_b32 v1, 2, v0
  buffer_store_dword v7, v1, s[16:19], 0 offen''')

def capture(fn, *args):
    t = Asm(); fn(t, *args); return t.l

def split_vmem(lines):
    chunks = []; cur = []
    for l in lines:
        cur.append(l)
        if l.strip().startswith('buffer_load') and not any(x.strip().startswith('s_cbranch_scc1 L_cpf') for x in cur):
            chunks.append(cur); cur = []
    if cur:
        if chunks: chunks[-1] += cur
        else: chunks.append(cur)
    return chunks

def interleave(a, vm_chunks, reads, lead=0):
    n = len(vm_chunks)
    per = len(reads) / float(n)
    k = 0
    for i, ch in enumerate(vm_chunks):
        for l in ch: a(l)
        upto = int(round(per * (i + 1)))
        for l in reads[k:upto]: a(l)
        k = upto
    for l in reads[k:]: a(l)

def srd(a, s, lo, hi, nbytes, add=0):
    if add:
        a(f'  s_add_u32 s{s}, s{lo}, {add}')
        a(f'  s_addc_u32 s{s+1}, s{hi}, 0')
    else:
        a(f'  s_mov_b32 s{s}, s{lo}')
        a(f'  s_mov_b32 s{s+1}, s{hi}')
    a(f'  s_mov_b32 s{s+2}, {nbytes}')
    a(f'  s_mov_b32 s{s+3}, 0x20000')

def allreduce16(a, v, t, op):
    a(f'  v_mov_b32 v{t}, v{v}')
    a(f'  v_permlane16_swap_b32 v{v}, v{t}')
    a(f'  {op} v{v}, v{v}, v{t}')
    a(f'  v_mov_b32 v{t}, v{v}')
    a(f'  v_permlane32_swap_b32 v{v}, v{t}')
    a(f'  {op} v{v}, v{v}, v{t}')

def gen_ln(a, name):
    kernel_head(a, name)
    a(f'''  s_cmp_ge_u32 s2, 256
  s_cbranch_scc1 L_ln_end
  s_cmp_ge_u32 s2, 128
  s_cbranch_scc1 L_ln_end
  s_load_dwordx2 s[4:5], s[0:1], 0
  s_load_dwordx2 s[6:7], s[0:1], 72
  v_lshrrev_b32 v1, 6, v0
  v_and_b32 v0, 63, v0
  v_readfirstlane_b32 s20, v1            ; wave 0..3
  v_and_b32 v2, 15, v0                   ; c
  v_lshrrev_b32 v3, 4, v0                ; g
  s_lshl_b32 s3, s2, 4
  v_add_u32 v4, s3, v2                   ; row
  v_lshlrev_b32 v4, 11, v4               ; row*2048
  v_lshl_add_u32 v4, v3, 4, v4           ; + g*16
  s_lshl_b32 s21, s20, 9
  v_add_u32 v4, s21, v4                  ; + w*512
  s_waitcnt lgkmcnt(0)''')
    srd(a, 8, 4, 5, 2048 * 2048)
    srd(a, 12, 6, 7, 4 << 20, WS_XN)
    for i in range(8):
        a(f'  buffer_load_dwordx4 {vr(8+4*i,4)}, v4, s[8:11], 0 offen offset:{i*64}')
    a(f'''  v_lshlrev_b32 v5, 2, v2                ; c*4
  s_lshl_b32 s21, s20, 6
  v_add_u32 v6, s21, v5                  ; w*64 + c*4''')
    for i in range(8):
        a(f'  s_waitcnt vmcnt({7-i})')
        for j in range(4):
            r = 8 + 4 * i + j
            a(f'  v_lshlrev_b32 v{64+8*i+2*j}, 16, v{r}')
            a(f'  v_and_b32 v{64+8*i+2*j+1}, 0xffff0000, v{r}')
    def tree(dst, term):
        for q in range(4):
            term(40 + q, 64 + q, True)
        for i in range(4, 64):
            term(40 + i % 4, 64 + i, False)
        a('  v_add_f32 v40, v40, v41')
        a('  v_add_f32 v42, v42, v43')
        a(f'  v_add_f32 v{dst}, v40, v42')
    def t_sum(acc_, r, first):
        a(f'  v_mov_b32 v{acc_}, v{r}' if first else f'  v_add_f32 v{acc_}, v{acc_}, v{r}')
    def t_sq(acc_, r, first):
        a(f'  v_mul_f32 v{acc_}, v{r}, v{r}' if first else f'  v_fmac_f32 v{acc_}, v{r}, v{r}')
    tree(44, t_sum)
    allreduce16(a, 44, 45, 'v_add_f32')
    a('''  ds_write_b32 v6, v44
  s_waitcnt lgkmcnt(0)
  s_barrier
  ds_read_b32 v46, v5
  ds_read_b32 v47, v5 offset:64
  ds_read_b32 v48, v5 offset:128
  ds_read_b32 v49, v5 offset:192
  s_waitcnt lgkmcnt(0)
  v_add_f32 v46, v46, v47
  v_add_f32 v48, v48, v49
  v_add_f32 v46, v46, v48
  v_mul_f32 v46, 0x3a800000, v46         ; mean''')
    for i in range(64):
        a(f'  v_sub_f32 v{64+i}, v{64+i}, v46')
    tree(44, t_sq)
    allreduce16(a, 44, 45, 'v_add_f32')
    a('''  ds_write_b32 v6, v44 offset:256
  s_waitcnt lgkmcnt(0)
  s_barrier
  ds_read_b32 v46, v5 offset:256
  ds_read_b32 v47, v5 offset:320
  ds_read_b32 v48, v5 offset:384
  ds_read_b32 v49, v5 offset:448
  s_waitcnt lgkmcnt(0)
  v_add_f32 v46, v46, v47
  v_add_f32 v48, v48, v49
  v_add_f32 v46, v46, v48
  v_mov_b32 v47, 0x3727c5ac              ; 1e-5
  v_fmac_f32 v47, 0x3a800000, v46
  v_rsq_f32 v46, v47
''')
    for i in range(8):
        for j in range(8):
            a(f'  v_mul_f32 v{64+8*i+j}, v{64+8*i+j}, v46')
        for j in range(4):
            a(f'  v_cvt_pk_bf16_f32 v{8+4*i+j}, v{64+8*i+2*j}, v{64+8*i+2*j+1}')
        a(f'  buffer_store_dwordx4 {vr(8+4*i,4)}, v4, s[12:15], 0 offen offset:{i*64}')
    a.label('L_ln_end')
    a('  s_endpgm')

ASLOT = 34816
WBASE = 2 * ASLOT
STAGE = 20480
OFF_Q = WBASE
OFF_G = OFF_Q + 6144
OFF_U = OFF_G + 7168
MAIN_LDS = 163840
A_PTR, A_OFF = 36, 0
WS_STATS = 0
STATS_L = 151552
CS_L = STATS_L + 4352
CNT_L = CS_L + 1280
V_CS = 84
WS_CSG = 1 << 20
S_DYN = 38
EX = 98304
V_X, V_XH, V_W, V_OFF = 8, 24, 28, 68
V_A0, V_A1, V_H0, V_H1, V_QE0, V_QE1, V_QO0, V_QO1, V_G0, V_G1 = range(73, 83)
V_PF, V_PFD, V_PFT = 83, 6, 5
V_ACCH, V_ACC = 92, 96
S_SRD, S_SOFF, S_STR, S_LDS, S_CNT = 40, 60, 65, 70, 75
S_W, S_MW, S_NJ, S_MI = 76, 77, 78, 79

def acc(b, t): return V_ACC + (b * 4 + t) * 4

def mfma(a, d, x, y, c=None):
    cc = vr(d, 4) if c is None else c
    a(f'  v_mfma_f32_16x16x32_bf16 {vr(d,4)}, {vr(x,4)}, {vr(y,4)}, {cc}')

def x_mfmas(mw):
    l = []
    hb = [2, 3, 4, 5][mw]
    w = V_W + 4 * hb
    l.append((V_ACCH, V_XH, w) if hb in (4, 5) else (V_ACCH, w, V_XH))
    for b in (2, 3, 4, 5, 0, 1, 6, 7, 8, 9):
        for t in range(4):
            w = V_W + 4 * b; x = V_X + 4 * t
            l.append((acc(b, t), x, w) if b in (4, 5) else (acc(b, t), w, x))
    l.insert(20, (V_CS, V_W + 4 * mw if mw < 2 else V_CS + 4, V_XH))
    return l

def y_mfmas():
    return [(acc(b, t), V_W + 4 * b, V_X + 4 * t) for b in range(10) for t in range(4)]

def x_reads(a, st, mw):
    pair, sp = st >> 1, (st & 1) * STAGE
    vA = [V_A0, V_A1][st & 1]; vH = [V_H0, V_H1][st & 1]; asl = (st >> 1) * ASLOT
    vQE = [V_QE0, V_QE1][pair]; vQO = [V_QO0, V_QO1][pair]; vG = [V_G0, V_G1][pair]
    for t in range(4):
        a(f'  ds_read_b128 {vr(V_X+4*t,4)}, v{vA} offset:{asl + t*2048}')
    a(f'  ds_read_b128 {vr(V_XH,4)}, v{vH} offset:{asl}')
    for b in range(6):
        base = vQE if b % 2 == 0 else vQO
        for s in range(2):
            a(f'  ds_read_b64_tr_b16 {vr(V_W+4*b+2*s,2)}, v{base} offset:{sp + s*16*192 + b*32}')
    for i, (reg, blk) in enumerate([(0, 0), (0, 1), (1, 0), (1, 1)]):
        b = 6 + i
        for s in range(2):
            a(f'  ds_read_b64_tr_b16 {vr(V_W+4*b+2*s,2)}, v{vG} offset:{sp + reg*7168 + s*16*224 + blk*32}')
    if mw >= 2:
        a(f'  v_add_u32 v1, s{S_DYN}, v{vG}')
        for s in range(2):
            a(f'  ds_read_b64_tr_b16 {vr(V_CS+4+2*s,2)}, v1 offset:{sp + s*16*224}')

def y_reads(a, st):
    pair, sp = st >> 1, (st & 1) * STAGE
    vA = [V_A0, V_A1][st & 1]; vG = [V_G0, V_G1][pair]; asl = (st >> 1) * ASLOT
    for t in range(4):
        a(f'  ds_read_b128 {vr(V_X+4*t,4)}, v{vA} offset:{asl + t*2048}')
    for i in range(10):
        reg, blk = i // 5, 2 + i % 5
        for s in range(2):
            a(f'  ds_read_b64_tr_b16 {vr(V_W+4*i+2*s,2)}, v{vG} offset:{sp + reg*7168 + s*16*224 + blk*32}')

def x_dma(a, st):
    for j in range(5):
        a(f'  s_add_u32 m0, s{S_LDS+j}, {st*STAGE}')
        a(f'  s_nop 0')
        a(f'  buffer_load_dwordx4 v{V_OFF+j}, {sr(S_SRD+4*j,4)}, s{S_SOFF+j} offen lds')
        if not O.x_sameW: a(f'  s_add_u32 s{S_SOFF+j}, s{S_SOFF+j}, s{S_STR+j}')

def y_dma(a, slot):
    for j in range(8):
        a(f'  s_add_u32 m0, s{S_LDS}, {slot*ASLOT + j*1024}')
        a(f'  s_add_u32 s61, s{S_SOFF}, {j*16384}')
        a(f'  buffer_load_dwordx4 v{V_OFF + (j & 1)}, {sr(S_SRD,4)}, s61 offen lds')
    a(f'  s_add_u32 m0, s{S_LDS+1}, {slot*ASLOT}')
    a(f'  s_mov_b64 exec, s[62:63]')
    a(f'  buffer_load_dwordx4 v{V_OFF+2}, {sr(S_SRD,4)}, s{S_SOFF} offen lds')
    a(f'  s_mov_b64 exec, -1')
    if not O.x_sameA: a(f'  s_add_u32 s{S_SOFF}, s{S_SOFF}, 128')

def loadphase(a, reads, vm):
    r = capture(reads)
    v = []
    for f in vm: v += split_vmem(capture(f))
    if v: interleave(a, v, r)
    else:
        for l in r: a(l)

def compute(a, ms, waitv, first=False):
    for (d, x, y) in ms:
        mfma(a, d, x, y, '0' if first else None)
    if waitv is not None: a(f'  s_waitcnt vmcnt({waitv})')

def compute_bar(a, ms, waitv):
    e = O.early
    if not e:
        compute(a, ms, waitv); a('  s_barrier'); return
    a(f'  s_setprio {O.p1}')
    for (d, x, y) in ms[:-e]: mfma(a, d, x, y)
    a(f'  s_setprio {O.p2}')
    if waitv is not None: a(f'  s_waitcnt vmcnt({waitv})')
    a('  s_barrier')
    for (d, x, y) in ms[-e:]: mfma(a, d, x, y)
    a('  s_setprio 0')

def x_setup(a, mw):
    for j in range(5):
        d = 5 * mw + j
        s_ = S_SRD + 4 * j
        if d < 6:
            part, base, lds, nrec, magic, W, rs = d, 4, OFF_Q, 1024*6144, 43691, 12, 6144
        elif d < 13:
            part, base, lds, nrec, magic, W, rs = d-6, 8, OFF_G, 1024*7168, 37450, 14, 7168
        else:
            part, base, lds, nrec, magic, W, rs = d-13, 10, OFF_U, 1024*7168, 37450, 14, 7168
        a(f'''  ; slot {j}: d={d} part={part}
  s_mov_b32 s{s_}, s{base}
  s_mov_b32 s{s_+1}, s{base+1}
  s_mov_b32 s{s_+2}, {nrec}
  s_mov_b32 s{s_+3}, 0x20000
  s_mov_b32 s{S_LDS+j}, {lds + part*1024}
  s_mov_b32 s{S_STR+j}, {rs*32}
  s_mov_b32 s{S_SOFF+j}, 0
  v_add_u32 v1, {part*64}, v0            ; f
  v_mul_u32_u24 v2, {magic}, v1
  v_lshrrev_b32 v2, 19, v2               ; p
  v_mul_u32_u24 v3, {W}, v2
  v_sub_u32 v3, v1, v3                   ; c''')
        if d < 6:
            a(f'''  v_lshrrev_b32 v4, 1, v2
  v_and_b32 v4, 2, v4
  v_xor_b32 v3, v3, v4                   ; cg
  v_lshrrev_b32 v4, 2, v3
  v_lshlrev_b32 v4, 11, v4               ; (cg>>2)*2048
  v_and_b32 v3, 3, v3
  v_lshl_add_u32 v4, v3, 4, v4           ; + (cg&3)*16
  v_add_u32 v4, s24, v4                  ; + nj*64''')
        else:
            a(f'''  v_lshlrev_b32 v4, 4, v3
  v_mov_b32 v6, s25
  v_mov_b32 v5, s26
  v_cmp_gt_u32 vcc, 12, v3
  v_cndmask_b32 v6, v5, v6, vcc
  v_add_u32 v4, v6, v4''')
        a(f'''  v_bfe_u32 v5, v2, 2, 2
  v_lshlrev_b32 v5, 3, v5                ; ((p>>2)&3)*8
  v_lshrrev_b32 v6, 4, v2
  v_lshl_add_u32 v5, v6, 2, v5           ; + (p>>4)*4
  v_and_b32 v6, 3, v2
  v_add_u32 v5, v5, v6                   ; k
  v_mul_u32_u24 v5, {rs}, v5
  v_add_u32 v{V_OFF+j}, v5, v4''')

def xpf_setup(a, mw):
    srd(a, 24, A_PTR, A_PTR + 1, 4 << 20, A_OFF)
    a(f'''  s_lshr_b32 s28, s2, 3
  s_lshl_b32 s28, s28, 6
  s_add_u32 s28, s28, {32*(mw >> 1)}
  v_add_u32 v{V_PF}, s28, v0
  v_lshlrev_b32 v{V_PF}, 11, v{V_PF}
  v_add_u32 v{V_PF}, {128*(mw & 1)}, v{V_PF}
  v_cmp_gt_u32 vcc, 32, v0
  v_mov_b32 v3, 0x7ffffff0
  v_cndmask_b32 v{V_PF}, v3, v{V_PF}, vcc''')
    if O.nopf: a('  s_mov_b32 s26, 0')
def x_pf(a):
    a(f'  buffer_load_dword v{V_PFD}, v{V_PF}, s[24:27], s28 offen')
    a(f'  s_add_u32 s28, s28, 256')

def x_pf_loop(a, mw):
    if O.w2early:
        L = f'L_cpf{mw}'
        a(f"""  s_cmp_eq_u32 s{S_CNT}, 1
  s_cbranch_scc1 {L}
  buffer_load_dword v{V_PFD}, v{V_PF}, s[24:27], s28 offen
  s_add_u32 s28, s28, 256
  s_branch {L}_d
{L}:
  s_mul_i32 s16, s2, 28672
  s_add_u32 s16, s84, s16
  s_addc_u32 s17, s85, 0
  s_mov_b32 s18, 28672
  s_mov_b32 s19, 0x20000
  s_mov_b32 s20, {mw*8192}
  v_lshlrev_b32 v2, 7, v0
  buffer_load_dword v{V_PFD}, v2, s[16:19], s20 offen
{L}_d:""")
        return
    if not O.codepf:
        return x_pf(a)
    L = f'L_cpf{mw}'
    a(f"""  s_cmp_eq_u32 s{S_CNT}, 1
  s_cbranch_scc1 {L}
  buffer_load_dword v{V_PFD}, v{V_PF}, s[24:27], s28 offen
  s_add_u32 s28, s28, 256
  s_branch {L}_d
{L}:
  s_getpc_b64 s[12:13]
{L}_pc:
  s_add_u32 s12, s12, L_xepi-{L}_pc
  s_addc_u32 s13, s13, 0
  v_lshlrev_b32 v2, 7, v0
  v_add_u32 v2, {mw*8192}, v2
  v_min_u32 v2, L_code_end-L_xepi-4, v2
  v_mov_b32 v3, s13
  v_add_co_u32 v2, vcc, s12, v2
  v_addc_co_u32 v3, vcc, 0, v3, vcc
  global_load_dword v{V_PFD}, v[2:3], off
{L}_d:""")

def ypf_setup(a):
    a(f'''  s_lshr_b32 s16, s2, 3
  s_and_b32 s17, s2, 7                   ; xcd
  s_cmp_eq_u32 s{S_MW}, 0
  s_cbranch_scc1 L_pf0
  ; gate / up: lane -> (step = lane/7 (0..3), line = lane%7) ; lanes >= 28 disabled
  s_cmp_eq_u32 s{S_MW}, 1
  s_cselect_b32 s48, s8, s10
  s_cselect_b32 s49, s9, s11
  s_mov_b32 s18, {1024*7168}
  s_cmp_eq_u32 s{S_MW}, 3
  s_cselect_b32 s50, 0, s18
  s_mov_b32 s51, 0x20000
  v_mul_u32_u24 v2, 9363, v0
  v_lshrrev_b32 v2, 16, v2               ; lane/7
  v_mul_u32_u24 v3, 7, v2
  v_sub_u32 v3, v0, v3                   ; lane%7
  v_mul_u32_u24 v2, {32*7168}, v2
  v_lshl_add_u32 v2, v3, 7, v2           ; + line*128
  s_mul_i32 s18, s16, 7168               ; row t
  s_mul_i32 s19, s17, 896
  s_add_u32 s18, s18, s19
  v_add_u32 v{V_PF}, s18, v2
  v_cmp_gt_u32 vcc, 28, v0
  v_mov_b32 v3, 0x7ffffff0
  v_cndmask_b32 v{V_PF}, v3, v{V_PF}, vcc
  s_mov_b32 s53, {4*32*7168}
  s_branch L_pfd
L_pf0:
  ; wqkv: lane -> (step = lane/6, seg = (lane%6)>>1, line = lane&1) ; lanes >= 24 disabled
  s_mov_b32 s48, s4
  s_mov_b32 s49, s5
  s_mov_b32 s50, {1024*6144}
  s_mov_b32 s51, 0x20000
  v_mul_u32_u24 v2, 10923, v0
  v_lshrrev_b32 v2, 16, v2               ; lane/6
  v_mul_u32_u24 v3, 6, v2
  v_sub_u32 v3, v0, v3                   ; lane%6
  v_mul_u32_u24 v2, {32*6144}, v2
  v_lshrrev_b32 v4, 1, v3
  v_lshl_add_u32 v2, v4, 11, v2          ; + seg*2048
  v_and_b32 v3, 1, v3
  v_lshl_add_u32 v2, v3, 7, v2           ; + line*128
  s_mul_i32 s18, s16, 6144
  s_lshl_b32 s19, s17, 8                 ; xcd*256
  s_add_u32 s18, s18, s19
  v_add_u32 v{V_PF}, s18, v2
  v_cmp_gt_u32 vcc, 24, v0
  v_mov_b32 v3, 0x7ffffff0
  v_cndmask_b32 v{V_PF}, v3, v{V_PF}, vcc
  s_mov_b32 s53, {4*32*6144}
L_pfd:
  s_mov_b32 s52, 0''')
    if O.w2early:
        a(f'''  s_cmp_eq_u32 s{S_MW}, 3
  s_cbranch_scc0 L_pf3
  s_lshl_b32 s18, s2, 13
  s_add_u32 s48, s86, s18
  s_addc_u32 s49, s87, 0
  s_mov_b32 s50, 8192
  v_lshlrev_b32 v{V_PF}, 7, v0
  s_mov_b32 s53, 8192
  s_mov_b32 s52, {(-8 * 8192) & 0xffffffff}
L_pf3:''')
    if O.nopf: a('  s_mov_b32 s50, 0')
def y_pf(a):
    a(f'  buffer_load_dword v{V_PFD}, v{V_PF}, s[48:51], s52 offen')
    a(f'  s_add_u32 s52, s52, s53')

def w2_pf(a, isx):
    if O.now2pf or O.w2early: return
    n, lo = (28672, 26) if isx else (8192, 24)
    a(f'''  s_mul_i32 s16, s2, {n}
  s_add_u32 s16, s{lo}, s16
  s_addc_u32 s17, s{lo+1}, 0
  s_mov_b32 s18, {n}
  s_mov_b32 s19, 0x20000
  s_lshl_b32 s20, s{S_MW}, 13
  v_lshlrev_b32 v1, 7, v0
  buffer_load_dword v{V_PFT}, v1, s[16:19], s20 offen''')

def stats_loads(a):
    a(f"""  s_mov_b32 s28, s36
  s_mov_b32 s29, s37
  s_mov_b32 s30, {2048*2048}
  s_mov_b32 s31, 0x20000
  s_lshl_b32 s14, s2, 3
  s_add_u32 s14, s14, s{S_W}
  s_lshl_b32 s14, s14, 11
  v_lshlrev_b32 v2, 5, v0
  v_add_u32 v2, s14, v2
  buffer_load_dwordx4 v[96:99], v2, s[28:31], 0 offen
  buffer_load_dwordx4 v[100:103], v2, s[28:31], 0 offen offset:16""")

def wave_sum(a, v, t):
    for r in (8, 4, 2, 1):
        a(f'  v_add_f32_dpp v{v}, v{v}, v{v} row_ror:{r} row_mask:0xf bank_mask:0xf')
    allreduce16(a, v, t, 'v_add_f32')

def stats_compute(a, nyounger):
    a(f'  s_waitcnt vmcnt({nyounger})')
    for i in range(8):
        a(f'  v_lshlrev_b32 v{104+2*i}, 16, v{96+i}')
        a(f'  v_and_b32 v{105+2*i}, 0xffff0000, v{96+i}')
    for q in range(4):
        a(f'  v_add_f32 v{120+q}, v{104+q}, v{108+q}')
        a(f'  v_add_f32 v{124+q}, v{112+q}, v{116+q}')
    for q in range(4): a(f'  v_add_f32 v{120+q}, v{120+q}, v{124+q}')
    a('  v_add_f32 v120, v120, v121')
    a('  v_add_f32 v122, v122, v123')
    a('  v_add_f32 v120, v120, v122')
    wave_sum(a, 120, 121)
    a('  v_mul_f32 v120, 0x3a800000, v120       ; mean')
    for i in range(16): a(f'  v_sub_f32 v{104+i}, v{104+i}, v120')
    for q in range(4): a(f'  v_mul_f32 v{124+q}, v{104+q}, v{104+q}')
    for i in range(4, 16): a(f'  v_fmac_f32 v{124 + i % 4}, v{104+i}, v{104+i}')
    a('  v_add_f32 v124, v124, v125')
    a('  v_add_f32 v126, v126, v127')
    a('  v_add_f32 v124, v124, v126')
    wave_sum(a, 124, 125)
    a("""  v_mov_b32 v122, 0x3727c5ac             ; 1e-5
  v_fmac_f32 v122, 0x3a800000, v124
  v_rsq_f32 v121, v122
  v_mov_b32 v123, 0""")
    srd(a, 16, 6, 7, 32768, WS_STATS)
    a(f"""  s_lshl_b32 s14, s2, 3
  s_add_u32 s14, s14, s{S_W}
  s_lshl_b32 s14, s14, 4
  v_mov_b32 v2, s14
  v_cmp_eq_u32 vcc, 0, v0
  s_and_saveexec_b64 s[20:21], vcc
  buffer_store_dwordx4 v[120:123], v2, s[16:19], 0 offen sc1
  s_mov_b64 exec, s[20:21]""")

def stats_gather(a):
    srd(a, 16, 6, 7, 32768, WS_STATS)
    a(f"""  s_lshl_b32 s12, s{S_MI}, 8
  v_add_u32 v2, s12, v0
  v_lshlrev_b32 v2, 4, v2                ; token*16
  s_mov_b32 m0, {STATS_L + 256}
  s_sub_u32 s12, s12, 16""")
    for j in range(4):
        a(f'  buffer_load_dwordx4 v2, s[16:19], 0 offen offset:{j*1024} sc1 lds')
    a(f"""  v_add_u32 v2, s12, v0
  v_max_i32 v2, 0, v2
  v_lshlrev_b32 v2, 4, v2
  s_mov_b32 m0, {STATS_L}
  s_mov_b64 exec, 0xffff
  buffer_load_dwordx4 v2, s[16:19], 0 offen sc1 lds
  s_mov_b64 exec, -1""")

def cs_idx(a, mw, d):
    if mw == 2:
        a(f'  s_mov_b32 s{d}, s{S_MI}')
    else:
        a(f'  s_add_u32 s{d}, s{S_MI}, 8')
        a(f'  s_min_u32 s{d}, s{d}, 13')

def cs_ldsoff(a, i):
    a(f"""  s_lshr_b32 s13, s{i}, 1
  s_and_b32 s14, s{i}, 1
  s_sub_u32 s15, s{i}, 2
  s_sub_u32 s16, s{i}, 7
  s_cmp_lt_u32 s{i}, 9
  s_cselect_b32 s15, s15, s16
  s_cselect_b32 s16, 0, 1
  s_cmp_lt_u32 s{i}, 4
  s_cselect_b32 s13, s13, s16
  s_cselect_b32 s14, s14, s15
  s_mul_i32 s13, s13, 7168
  s_lshl_b32 s14, s14, 5
  s_add_u32 s{S_DYN}, s13, s14""")

def csg_slot(a, mw):
    cs_idx(a, mw, 12)
    a(f"""  s_lshl_b32 s13, s{S_NJ}, 4
  s_add_u32 s13, s13, s12
  s_lshl_b32 s13, s13, 6
  s_add_u32 s13, s13, {WS_CSG}
  s_add_u32 s16, s6, s13
  s_addc_u32 s17, s7, 0
  s_mov_b32 s18, 64
  s_mov_b32 s19, 0x20000""")

def csg_clear(a, mw, lbl):
    a(f'  s_cmp_eq_u32 s{S_CNT}, 6')
    a(f'  s_cbranch_scc0 {lbl}')
    if mw == 3:
        a(f'  s_cmp_ge_u32 s{S_MI}, 6')
        a(f'  s_cbranch_scc1 {lbl}')
    csg_slot(a, mw)
    a(f"""  v_lshlrev_b32 v1, 2, v0
  v_mov_b32 v2, -1
  buffer_store_dword v2, v1, s[16:19], 0 offen sc1""")
    a.label(lbl)

def cs_publish(a, mw, lbl):
    if mw == 3:
        a(f'  s_cmp_ge_u32 s{S_MI}, 6')
        a(f'  s_cbranch_scc1 {lbl}')
    csg_slot(a, mw)
    a(f"""  v_lshrrev_b32 v4, 4, v0
  v_lshlrev_b32 v4, 4, v4                ; g*16
  s_mov_b32 s12, 0x00010001
  s_mov_b32 s13, 0x00010001
  s_mov_b64 exec, s[12:13]
  buffer_store_dwordx4 {vr(V_CS,4)}, v4, s[16:19], 0 offen sc1
  s_mov_b64 exec, -1""")
    a.label(lbl)

def cs_setup(a, first, n):
    a(f"""  s_lshl_b32 s20, s{S_NJ}, 10
  s_add_u32 s20, s20, {WS_CSG + first*64}
  s_add_u32 s20, s6, s20
  s_addc_u32 s21, s7, 0
  s_mov_b32 s22, {n*64}
  s_mov_b32 s23, 0x20000
  v_lshrrev_b32 v2, 4, v0
  v_lshlrev_b32 v2, 4, v2""")

def cs_load(a, b, dst):
    a(f'  buffer_load_dwordx4 {vr(dst+4*b,4)}, v2, s[20:23], 0 offen offset:{b*64} sc1')

def cs_check(a, n, dst, lbl):
    a(f'  s_mov_b32 s29, 0x40000')
    a.label(lbl)
    a('  s_waitcnt vmcnt(0)')
    a(f'  v_max3_u32 v3, v{dst}, v{dst+1}, v{dst+2}')
    r = dst + 3
    while r + 1 < dst + 4 * n:
        a(f'  v_max3_u32 v3, v3, v{r}, v{r+1}'); r += 2
    if r < dst + 4 * n: a(f'  v_max_u32 v3, v3, v{r}')
    a(f"""  v_cmp_eq_u32 vcc, -1, v3
  s_cmp_eq_u64 vcc, 0
  s_cbranch_scc1 {lbl}_ok
  s_sub_u32 s29, s29, 1
  s_cmp_eq_u32 s29, 0
  s_cbranch_scc1 {lbl}_ok""")
    for b in range(n): cs_load(a, b, dst)
    a(f'  s_branch {lbl}')
    a.label(f'{lbl}_ok')

def cs_gather(a, first, n, dst, lbl):
    cs_setup(a, first, n)
    for b in range(n): cs_load(a, b, dst)
    cs_check(a, n, dst, lbl)

def zero_acc(a, lo):
    for r in range(lo, 256):
        a(f'  v_mov_b32 v{r}, 0')

def gen_x(a, mw):
    L = f'X{mw}'
    ms = x_mfmas(mw)
    a.label(f'L_{L}')
    x_setup(a, mw)
    if mw >= 2: cs_idx(a, mw, 12); cs_ldsoff(a, 12)
    stamp(a, 1)
    for st in range(3): x_dma(a, st)
    if mw == 0: init_clear(a)
    xpf_setup(a, mw)
    a(f'  s_mov_b32 s28, 256')
    x_pf(a)
    stats_compute(a, 16)
    zero_acc(a, V_CS)
    a('  s_waitcnt vmcnt(12)')
    a('  s_barrier')
    stamp(a, 2)
    loadphase(a, lambda t: x_reads(t, 0, mw), [lambda t: x_dma(t, 3)])
    a('  s_waitcnt lgkmcnt(0)')
    a('  s_barrier')
    xw = [10, 11, 11, 11]
    def full(kk):
        compute_bar(a, ms, xw[kk])
        vm = [lambda t: x_dma(t, kk)] if not O.x_noW else []
        if kk == 0: vm.append(lambda t: x_pf_loop(t, mw))
        loadphase(a, lambda t: x_reads(t, (kk + 1) % 4, mw), vm)
        if kk == 1 and mw >= 2: csg_clear(a, mw, f'L_{L}_nocs')
        if kk >= 2: px_clear(a, f'L_{L}_noclr{kk}', 4 * (kk - 2))
        if kk == 1 and mw == 0:
            a(f'  s_cmp_eq_u32 s{S_CNT}, 4')
            a(f'  s_cbranch_scc0 L_{L}_noinit')
            init_count(a)
            a.label(f'L_{L}_noinit')
        a('  s_waitcnt lgkmcnt(0)')
        a('  s_barrier')
    a(f'  s_mov_b32 s{S_CNT}, 7')
    a.label(f'L_{L}_loop')
    for kk in range(4): full(kk)
    a(f'  s_sub_u32 s{S_CNT}, s{S_CNT}, 1')
    a(f'  s_cmp_lg_u32 s{S_CNT}, 0')
    a(f'  s_cbranch_scc1 L_{L}_loop')
    a('  s_load_dwordx2 s[24:25], s[0:1], 16      ; wo')
    a('  s_load_dwordx2 s[26:27], s[0:1], 48      ; wd')
    if mw == 0: a('  s_load_dwordx2 s[28:29], s[0:1], 64      ; debug')
    for kk, wv in zip(range(4), (10, 5, 0, None)):
        compute(a, [m for m in ms if not (kk == 3 and mw >= 2 and m[0] == V_CS)], wv)
        a('  s_barrier')
        if kk < 3:
            x_reads(a, (kk + 1) % 4, mw)
            if kk == 0 and mw == 0: init_check_issue(a)
            if kk == 2 and mw >= 2:
                a('  s_waitcnt lgkmcnt(0)')
                mfma(a, V_CS, V_CS + 4, V_XH)
                cs_publish(a, mw, f'L_{L}_nopub')
            if kk == 2:
                if mw == 0:
                    init_check(a)
                    stats_gather(a)
                w2_pf(a, True)
                g2_bstate(a)
                g2_dmaB(a, 0); g2_dmaB(a, 1)
            a('  s_waitcnt lgkmcnt(0)')
            a('  s_barrier')
    a(f'  s_mov_b32 s39, {mw}')
    a('  s_branch L_xepi')

def gen_y(a):
    L = 'Y'
    ms = y_mfmas()
    a.label(f'L_{L}')
    stamp(a, 1)
    y_dma(a, 0)
    y_pf(a)
    y_pf(a)
    a(f'''  s_cmp_eq_u32 s{S_MW}, 0
  s_cbranch_scc0 L_Y_noones
  v_lshlrev_b32 v2, 2, v0
  v_mov_b32 v3, 0x3f803f80
  ds_write_b32 v2, v3 offset:32768
  v_add_u32 v2, {ASLOT}, v2
  ds_write_b32 v2, v3 offset:32768
  v_mov_b32 v2, {CNT_L}
  v_mov_b32 v3, 0
  ds_write_b32 v2, v3
L_Y_noones:''')
    stats_compute(a, 11)
    zero_acc(a, V_ACC)
    a('  s_waitcnt vmcnt(3) lgkmcnt(0)')
    a('  s_barrier')
    stamp(a, 2)
    a('  s_barrier')
    def full(kk, tail=False):
        vm = []
        if kk == 0 and not O.x_noA: vm.append(lambda t: y_dma(t, 1))
        if kk == 2 and not tail and not O.x_noA: vm.append(lambda t: y_dma(t, 0))
        if kk == 0 and not tail: vm.append(y_pf)
        loadphase(a, lambda t: y_reads(t, kk), vm)
        a('  s_waitcnt lgkmcnt(0)')
        if kk == 1: a(f'  s_waitcnt vmcnt({0 if tail else 1})')
        if kk == 3 and not tail: a('  s_waitcnt vmcnt(0)')
        a('  s_barrier')
        if tail and kk == 3:
            cs_setup(a, 4, 10)
            for i, (d, x, y) in enumerate(ms):
                mfma(a, d, x, y)
                if i % 4 == 3: cs_load(a, i // 4, V_W)
            a('  s_barrier')
        elif tail:
            compute(a, ms, None)
            a('  s_barrier')
        else:
            compute_bar(a, ms, None)
    a(f'  s_mov_b32 s{S_CNT}, 7')
    a.label(f'L_{L}_loop')
    for kk in range(4): full(kk)
    a(f'  s_sub_u32 s{S_CNT}, s{S_CNT}, 1')
    a(f'  s_cmp_lg_u32 s{S_CNT}, 0')
    a(f'  s_cbranch_scc1 L_{L}_loop')
    a('  s_load_dwordx2 s[24:25], s[0:1], 16      ; wo')
    a('  s_load_dwordx2 s[26:27], s[0:1], 48      ; wd')
    for kk in range(4): full(kk, True)
    a('  s_branch L_yepi')

def cs_write(a, items):
    a(f'''  v_lshrrev_b32 v2, 4, v0
  v_lshlrev_b32 v2, 4, v2
  v_add_u32 v2, {CS_L}, v2               ; + g*16
  s_mov_b32 s12, 0x00010001
  s_mov_b32 s13, 0x00010001
  s_mov_b64 exec, s[12:13]''')
    for r, blk in items:
        a(f'  ds_write_b128 v2, {vr(r,4)} offset:{blk*64}')
    a('  s_mov_b64 exec, -1')

GA = -2.0 * 0.7978845608028654 * 1.4426950408889634
GB = GA * 0.044715
def fbits(x): return '0x%08x' % struct.unpack('<I', struct.pack('<f', x))[0]

def stats_consts(a, st):
    a(f'  v_mul_f32 v{st+3}, v{st+1}, v{st+1}')
    a(f'  v_mul_f32 v{st+1}, {fbits(GA)}, v{st+1}')
    a(f'  v_mul_f32 v{st+3}, v{st+3}, v{st+1}')
    a(f'  v_mul_f32 v{st+3}, {fbits(0.044715)}, v{st+3}')

LO = 'op_sel:[0,{},0] op_sel_hi:[1,{},1]'
def center(a, r, cs, st):
    for h in (0, 2):
        a(f'  v_pk_fma_f32 {vr(r+h,2)}, {vr(cs+h,2)}, {vr(st,2)}, {vr(r+h,2)} op_sel_hi:[1,0,1] neg_lo:[0,1,0] neg_hi:[0,1,0]')
def scale(a, r, st):
    for h in (0, 2):
        a(f'  v_pk_mul_f32 {vr(r+h,2)}, {vr(r+h,2)}, {vr(st,2)} op_sel:[0,1] op_sel_hi:[1,1]')

def geglu(a, g, u, dst, tmp, st):
    t0, t1, t2, t3 = tmp, tmp + 2, tmp + 4, tmp + 6
    P = lambda r: vr(r, 2)
    a(f'  v_pk_mul_f32 {P(t0)}, {P(g)}, {P(g)}')
    a(f'  v_pk_mul_f32 {P(t1)}, {P(g+2)}, {P(g+2)}')
    a(f'  v_pk_fma_f32 {P(t0)}, {P(t0)}, {P(st+2)}, {P(st)} op_sel:[0,1,1] op_sel_hi:[1,1,1]')
    a(f'  v_pk_fma_f32 {P(t1)}, {P(t1)}, {P(st+2)}, {P(st)} op_sel:[0,1,1] op_sel_hi:[1,1,1]')
    a(f'  v_pk_mul_f32 {P(t0)}, {P(t0)}, {P(g)}')
    a(f'  v_pk_mul_f32 {P(t1)}, {P(t1)}, {P(g+2)}')
    a(f'  v_pk_mul_f32 {P(t2)}, {P(g)}, {P(u)}')
    a(f'  v_exp_f32 v{t0}, v{t0}')
    a(f'  v_exp_f32 v{t0+1}, v{t0+1}')
    a(f'  v_exp_f32 v{t1}, v{t1}')
    a(f'  v_exp_f32 v{t1+1}, v{t1+1}')
    a(f'  v_pk_mul_f32 {P(t3)}, {P(g+2)}, {P(u+2)}')
    a(f'  v_pk_fma_f32 {P(t0)}, {P(t0)}, {P(st+2)}, {P(st+2)} op_sel_hi:[1,0,0]')
    a(f'  v_pk_fma_f32 {P(t1)}, {P(t1)}, {P(st+2)}, {P(st+2)} op_sel_hi:[1,0,0]')
    a(f'  v_rcp_f32 v{t0}, v{t0}')
    a(f'  v_rcp_f32 v{t0+1}, v{t0+1}')
    a(f'  v_rcp_f32 v{t1}, v{t1}')
    a(f'  v_rcp_f32 v{t1+1}, v{t1+1}')
    a(f'  s_nop 0')
    a(f'  v_pk_mul_f32 {P(t2)}, {P(t2)}, {P(t0)}')
    a(f'  v_pk_mul_f32 {P(t3)}, {P(t3)}, {P(t1)}')
    a(f'  v_cvt_pk_bf16_f32 v{dst}, v{t2}, v{t2+1}')
    a(f'  v_cvt_pk_bf16_f32 v{dst+1}, v{t3}, v{t3+1}')

def hf_srd(a):
    srd(a, 16, 6, 7, HF_BYTES, WS_HF)
    a(f'''  s_lshl_b32 s12, s{S_MI}, 2
  s_add_u32 s12, s12, s{S_MW}
  s_mul_i32 s12, s12, {144*4096}
  v_lshlrev_b32 v1, 4, v0
  v_add_u32 v1, s12, v1
  s_lshr_b32 s12, s{S_NJ}, 4
  s_mul_i32 s12, s12, 72                 ; base
  s_and_b32 s13, s{S_NJ}, 15             ; n16
  s_add_u32 s14, s12, s13
  s_lshl_b32 s36, s14, 12                ; o
  s_add_u32 s14, s14, 16
  s_lshl_b32 s34, s14, 12
  s_lshl_b32 s14, s13, 1
  s_add_u32 s14, s14, s12
  s_add_u32 s14, s14, 32
  s_lshl_b32 s37, s14, 12
  s_lshr_b32 s14, s13, 1
  s_add_u32 s14, s14, s12
  s_add_u32 s14, s14, 64
  s_lshl_b32 s35, s14, 12
  s_and_b32 s13, s13, 1
  s_lshl_b32 s13, s13, 10
  s_add_u32 s35, s35, s13''')

def o_signal(a):
    a(f"""  s_waitcnt vmcnt(2)
  v_mov_b32 v2, {CNT_L}
  v_mov_b32 v3, 1
  s_mov_b64 exec, 1
  ds_add_rtn_u32 v3, v2, v3
  s_waitcnt lgkmcnt(0)
  v_readfirstlane_b32 s12, v3
  s_mov_b64 exec, -1
  s_cmp_eq_u32 s12, 3
  s_cbranch_scc0 L_osig_done
  s_lshl_b32 s12, s{S_MI}, 7
  s_lshl_b32 s13, s{S_NJ}, 2
  s_add_u32 s12, s12, s13
  s_add_u32 s12, s12, {FLAG_G1 + 1024}""")
    flag_srd(a, 20)
    a(f"""  v_mov_b32 v2, s12
  v_mov_b32 v3, 1
  s_mov_b64 exec, 1
  buffer_store_dword v3, v2, s[20:23], 0 offen sc1
  s_mov_b64 exec, -1
L_osig_done:""")

def gen_xepi(a):
    a0 = a; a = Asm()
    gen_xepi_(a)
    for l in (sched.sched(a.l) if O.sched else a.l): a0(l)

def gen_xepi_(a):
    a.label('L_xepi')
    stamp(a, 3)
    QP, KP, VP0, VP1 = 8, 24, 44, 54
    a('  s_nop 7')
    def pack(dst, src):
        a(f'  v_cvt_pk_bf16_f32 v{dst}, v{src}, v{src+1}')
        a(f'  v_cvt_pk_bf16_f32 v{dst+1}, v{src+2}, v{src+3}')
    a(f'''  s_mul_i32 s12, s{S_MW}, 5120
  s_add_u32 s12, s12, {EX}
  v_lshlrev_b32 v2, 4, v0
  v_add_u32 v3, s12, v2
  ds_write_b128 v3, {vr(acc(2,3),4)}
  ds_write_b128 v3, {vr(acc(3,3),4)} offset:1024
  ds_write_b128 v3, {vr(acc(4,3),4)} offset:2048
  ds_write_b128 v3, {vr(acc(5,3),4)} offset:3072
  ds_write_b128 v3, {vr(V_ACCH,4)} offset:4096
  s_sub_u32 s13, s12, 5120
  s_add_u32 s14, s13, 1024
  s_add_u32 s15, s13, 2048
  s_add_u32 s22, s13, 3072
  s_mov_b32 s20, {EX+4096}
  s_mov_b32 s21, {EX+4096+5120}
  s_mov_b32 s23, {EX+4096+2*5120}
  s_mov_b32 s29, {EX+4096+3*5120}
  s_cmp_eq_u32 s{S_MW}, 0
  s_cselect_b32 s20, s20, s13
  s_cselect_b32 s21, s21, s14
  s_cselect_b32 s15, s23, s15
  s_cselect_b32 s22, s29, s22
  v_add_u32 v80, s20, v2
  v_add_u32 v81, s21, v2
  v_add_u32 v82, s15, v2
  v_add_u32 v83, s22, v2''')
    for mw in range(4):
        a(f'  s_cmp_eq_u32 s39, {mw}')
        a(f'  s_cbranch_scc0 L_xcs{mw}')
        if mw < 2:
            cs_write(a, [(V_CS, mw), (V_ACCH, 2 + mw)])
        else:
            a(f'''  v_lshlrev_b32 v4, 2, v0
  v_add_u32 v4, {CS_L + (2 + mw) * 64}, v4
  s_mov_b64 exec, 0xffff
  ds_write_b32 v4, v{V_ACCH}
  s_mov_b64 exec, -1''')
        if mw == 0:
            a(f'  s_waitcnt vmcnt({8 if (O.now2pf or O.w2early) else 9})')
        a.label(f'L_xcs{mw}')
    hf_srd(a)
    a('''  v_and_b32 v66, 15, v0                  ; c
  v_lshrrev_b32 v67, 4, v0
  v_lshlrev_b32 v67, 2, v67              ; 4g
''')
    a(f'''  s_lshl_b32 s12, s{S_MW}, 10
  s_add_u32 s12, s12, {STATS_L}
  v_lshl_add_u32 v4, v66, 4, s12
  v_lshl_add_u32 v6, v67, 4, s12
  v_lshlrev_b32 v92, 2, v67
  v_add_u32 v92, {CS_L}, v92
  v_lshlrev_b32 v93, 2, v66
  v_add_u32 v93, {CS_L}, v93
  v_sub_u32 v66, v66, v67                ; c - 4g''')
    for j in range(4):
        a(f'''  v_subrev_u32 v68, {j}, v66             ; delta
  v_and_b32 v69, 0xfffffff1, v68
  v_cmp_eq_u32 s[{44+2*j}:{45+2*j}], 0, v69
  v_add_u32 v68, 16, v68
  v_and_b32 v69, 0xfffffff1, v68
  v_cmp_eq_u32 s[{52+2*j}:{53+2*j}], 0, v69''')
    a(f'''  s_or_b32 s12, s{S_MI}, s{S_MW}
  s_cmp_eq_u32 s12, 0
  s_cselect_b64 s[60:61], 0, -1''')
    a('  s_waitcnt lgkmcnt(0)')
    a('  s_barrier')
    a(f'''  ds_read_b128 v[64:67], v80
  ds_read_b128 v[68:71], v81
  ds_read_b128 v[72:75], v82
  ds_read_b128 v[76:79], v83
  ds_read_b128 v[84:87], v92 offset:{2*64}
  ds_read_b128 v[88:91], v92 offset:{3*64}
  ds_read_b32 v2, v93 offset:{4*64}
  ds_read_b32 v3, v93 offset:{5*64}
  ds_read_b128 v[80:83], v4''')
    def statsN(dst, t):
        for j in range(4):
            a(f'  ds_read_b64 {vr(dst+2*j,2)}, v6 offset:{(t+1)*256 + j*16}')
    def corrV(r, cs, sn):
        for j in range(4):
            a(f'  v_fma_f32 v{r+j}, -v{sn+2*j}, v{cs}, v{r+j}')
        for j in range(4):
            a(f'  v_mul_f32 v{r+j}, v{r+j}, v{sn+2*j+1}')
    statsN(8, -1)
    statsN(16, 0)
    a('  s_waitcnt lgkmcnt(8)')
    for r, cs in ((64, 84), (68, 88)):
        center(a, r, cs, 80); scale(a, r, 80)
    pack(KP, 64); pack(KP + 2, 68)
    a('  s_waitcnt lgkmcnt(4)')
    corrV(72, 2, 8); corrV(76, 3, 8)
    pack(VP0, 72); pack(VP1, 76)
    for t in range(4):
        a(f'  ds_read_b128 {vr(64+4*t,4)}, v4 offset:{(t+1)*256}')
    statsN(8, 1)
    a('  s_waitcnt lgkmcnt(8)')
    corrV(acc(4, 0), 2, 16); corrV(acc(5, 0), 3, 16)
    statsN(16, 2)
    pack(VP0 + 2, acc(4, 0)); pack(VP1 + 2, acc(5, 0))
    a('  s_waitcnt lgkmcnt(4)')
    corrV(acc(4, 1), 2, 8); corrV(acc(5, 1), 3, 8)
    statsN(8, 3)
    pack(VP0 + 4, acc(4, 1)); pack(VP1 + 4, acc(5, 1))
    for t in range(4):
        for blk, cs in ((2, 84), (3, 88)):
            center(a, acc(blk, t), cs, 64 + 4 * t); scale(a, acc(blk, t), 64 + 4 * t)
        pack(KP + 4 + 4 * t, acc(2, t)); pack(KP + 6 + 4 * t, acc(3, t))
    a(f'  ds_read_b128 v[84:87], v92 offset:{0*64}')
    a(f'  ds_read_b128 v[88:91], v92 offset:{1*64}')
    a('  s_waitcnt lgkmcnt(6)')
    corrV(acc(4, 2), 2, 16); corrV(acc(5, 2), 3, 16)
    pack(VP0 + 6, acc(4, 2)); pack(VP1 + 6, acc(5, 2))
    a('  s_waitcnt lgkmcnt(2)')
    corrV(acc(4, 3), 2, 8); corrV(acc(5, 3), 3, 8)
    pack(VP0 + 8, acc(4, 3)); pack(VP1 + 8, acc(5, 3))
    a('  s_waitcnt lgkmcnt(0)')
    for t in range(4):
        for blk, cs in ((0, 84), (1, 88)):
            center(a, acc(blk, t), cs, 64 + 4 * t)
        pack(QP + 4 * t, acc(0, t)); pack(QP + 4 * t + 2, acc(1, t))
    SC = (32 ** -0.5) * 1.4426950408889634
    for t in range(4):
        a(f'  v_mul_f32 v{84+t}, {fbits(SC)}, v{65+4*t}')
    cs_gather(a, 0, 4, acc(4, 0), 'L_xcsg')
    a(f'  v_mov_b32 v88, 0xf149f2ca              ; -1e30')
    S = 68
    for t in (1, 2, 3, 0):
        mfma(a, S, KP + 4 * t, QP + 4 * t, '0')
        mfma(a, S + 4, KP + 4 + 4 * t, QP + 4 * t, '0')
        for j in range(4):
            m = f's[{52+2*j}:{53+2*j}]'
            if t == 0:
                a(f'  s_and_b64 s[62:63], {m}, s[60:61]')
                m = 's[62:63]'
            a(f'  v_cndmask_b32 v{S+j}, v88, v{S+j}, {m}')
        for j in range(4):
            a(f'  v_cndmask_b32 v{S+4+j}, v88, v{S+4+j}, s[{44+2*j}:{45+2*j}]')
        a(f'  v_max3_f32 v76, v{S}, v{S+1}, v{S+2}')
        a(f'  v_max3_f32 v76, v76, v{S+3}, v{S+4}')
        a(f'  v_max3_f32 v76, v76, v{S+5}, v{S+6}')
        a(f'  v_max_f32 v76, v76, v{S+7}')
        allreduce16(a, 76, 77, 'v_max_f32')
        a(f'  v_mul_f32 v76, v{84+t}, v76')
        for j in range(8):
            a(f'  v_fma_f32 v{S+j}, v{S+j}, v{84+t}, -v76')
        for j in range(8):
            a(f'  v_exp_f32 v{S+j}, v{S+j}')
        a(f'  v_add_f32 v76, v{S}, v{S+1}')
        a(f'  v_add_f32 v77, v{S+2}, v{S+3}')
        a(f'  v_add_f32 v78, v{S+4}, v{S+5}')
        a(f'  v_add_f32 v79, v{S+6}, v{S+7}')
        for j in range(4):
            a(f'  v_cvt_pk_bf16_f32 v{80+j}, v{S+2*j}, v{S+2*j+1}')
        a(f'  v_add_f32 v76, v76, v77')
        a(f'  v_add_f32 v78, v78, v79')
        a(f'  v_add_f32 v76, v76, v78')
        Oa = acc(0, t); O1 = acc(1, t)
        mfma(a, Oa, VP0 + 2 * t, 80, '0')
        mfma(a, O1, VP1 + 2 * t, 80, '0')
        allreduce16(a, 76, 77, 'v_add_f32')
        a(f'  v_rcp_f32 v76, v76')
        for j in range(4):
            a(f'  v_mul_f32 v{Oa+j}, v{Oa+j}, v76')
        for j in range(4):
            a(f'  v_mul_f32 v{O1+j}, v{O1+j}, v76')
        R = acc(2, t)
        pack(R, Oa); pack(R + 2, O1)
        a(f'  buffer_store_dwordx4 {vr(R,4)}, v1, s[16:19], s36 offen offset:{t*1024}{HFF()}')
    for t in range(4):
        a(f'  ds_read_b128 {vr(24+4*t,4)}, v4 offset:{(t+1)*256}')
    a('  s_waitcnt lgkmcnt(0)')
    for t in range(4): stats_consts(a, 24 + 4 * t)
    for t in range(4):
        st = 24 + 4 * t
        for i, b in enumerate((6, 7, 8, 9)): center(a, acc(b, t), acc(4, 0) + 4 * i, st)
        R = acc(6, t)
        geglu(a, acc(6, t), acc(8, t), R, 40 + 16 * (t & 1), st)
        geglu(a, acc(7, t), acc(9, t), R + 2, 48 + 16 * (t & 1), st)
        a(f'  buffer_store_dwordx4 {vr(R,4)}, v1, s[16:19], s34 offen offset:{t*1024}{HFF()}')
        if t == 1: o_signal(a)
    a('  s_branch L_g2_entry')

def gen_yepi(a):
    a0 = a; a = Asm()
    gen_yepi_(a)
    for l in (sched.sched(a.l) if O.sched else a.l): a0(l)

def gstore(a, line, n=[0]):
    if O.dry:
        n[0] += 1
        a(f'  s_cbranch_execz L_gs{n[0]}')
        a(line)
        a(f'L_gs{n[0]}:')
    else:
        a(line)

def dry_exit(a, lbl):
    if O.dry:
        a(f'  s_cbranch_execz L_dry_ret')
        a(f'{lbl}:')

def gen_yepi_(a):
    a.label('L_yepi')
    stamp(a, 3)
    ST, CS = 8, V_W
    a(f'''  v_and_b32 v66, 15, v0                  ; c'''.replace('v66', 'v24'))
    a(f'''  s_lshl_b32 s12, s{S_MW}, 10
  s_add_u32 s12, s12, {STATS_L + 256}
  v_lshl_add_u32 v4, v24, 4, s12''')
    for t in range(4):
        a(f'  ds_read_b128 {vr(ST+4*t,4)}, v4 offset:{t*256}')
    cs_check(a, 10, CS, 'L_ycsg')
    w2_pf(a, False)
    g2_bstate(a)
    g2_dmaB(a, 0); g2_dmaB(a, 1)
    hf_srd(a)
    a('  s_mov_b32 s14, s37')
    a('  s_add_u32 s15, s37, 4096')
    a('  s_waitcnt lgkmcnt(0)')
    for t in range(4): stats_consts(a, ST + 4 * t)
    tmps = [68, 76, 84]; n = [0]
    def T():
        n[0] += 1; return tmps[n[0] % 3]
    for t in range(4):
        if O.stamps == 2: stamp(a, 16 + t)
        st = ST + 4 * t
        for p, so in ((0, 's14'), (1, 's15')):
            for b in (2 * p, 2 * p + 1, 5 + 2 * p, 6 + 2 * p): center(a, acc(b, t), CS + 4 * b, st)
            R = acc(2 * p, t)
            geglu(a, acc(2 * p, t), acc(5 + 2 * p, t), R, T(), st)
            geglu(a, acc(2 * p + 1, t), acc(6 + 2 * p, t), R + 2, T(), st)
            a(f'  buffer_store_dwordx4 {vr(R,4)}, v1, s[16:19], {so} offen offset:{t*1024}{HFF()}')
    for tp in range(2):
        if O.stamps == 2: stamp(a, 20 + tp)
        R = acc(4, 2 * tp)
        for t in (2 * tp, 2 * tp + 1):
            for b in (4, 9): center(a, acc(b, t), CS + 4 * b, ST + 4 * t)
        geglu(a, acc(4, 2 * tp), acc(9, 2 * tp), R, T(), ST + 8 * tp)
        geglu(a, acc(4, 2 * tp + 1), acc(9, 2 * tp + 1), R + 2, T(), ST + 8 * tp + 4)
        a(f'  buffer_store_dwordx4 {vr(R,4)}, v1, s[16:19], s35 offen offset:{tp*2048}{HFF()}')
    a('  s_waitcnt vmcnt(10)')
    a('  s_branch L_g2_entry')

def gen_dry_ret(a):
    if not O.dry: return
    a.label('L_dry_ret')
    a('  s_mov_b64 exec, -1')
    for r in range(8):
        a(f'  s_cmp_eq_u32 s39, {r}')
        a(f'  s_cbranch_scc1 L_dry_c{r}')
    a('  s_endpgm')

def g2_ids(a, kh, mt, nt, tile):
    a(f'''  s_and_b32 s3, s2, 7                    ; x
  s_lshr_b32 s16, s2, 3                  ; t
  s_and_b32 s{kh}, s3, 1
  s_lshr_b32 s17, s3, 1
  s_lshl_b32 s17, s17, 2
  s_and_b32 s18, s16, 3
  s_add_u32 s{mt}, s17, s18              ; mt
  s_lshr_b32 s{nt}, s16, 2               ; nt
  s_lshl_b32 s{tile}, s{mt}, 3
  s_add_u32 s{tile}, s{tile}, s{nt}''')

def flag_srd(a, s):
    a(f'  s_add_u32 s{s}, s6, {WS_FLAG}')
    a(f'  s_addc_u32 s{s+1}, s7, 0')
    a(f'  s_mov_b32 s{s+2}, {FLAG_G1 + 2048}')
    a(f'  s_mov_b32 s{s+3}, 0x20000')

def init_clear(a):
    a(f'''  s_lshl_b32 s12, s{S_MI}, 7
  s_lshl_b32 s13, s{S_NJ}, 2
  s_add_u32 s12, s12, s13
  s_add_u32 s12, s12, {FLAG_G1}''')
    flag_srd(a, 16)
    a(f'''  v_lshlrev_b32 v2, 10, v0
  v_add_u32 v2, s12, v2
  v_mov_b32 v3, 0
  v_cmp_gt_u32 vcc, 2, v0
  s_and_saveexec_b64 s[20:21], vcc
  buffer_store_dword v3, v2, s[16:19], 0 offen sc1
  s_mov_b64 exec, s[20:21]''')

def init_check_issue(a):
    a(f"""  s_waitcnt lgkmcnt(0)
  s_mov_b32 s30, 256
  s_mov_b32 s31, 0x20000
  v_mov_b32 v2, 0
  buffer_load_dword v3, v2, s[28:31], 0 offen sc1""")

def init_check(a):
    a(f"""  s_mov_b32 s12, 0x40000
  v_mov_b32 v2, 0
L_ichk:
  v_readfirstlane_b32 s13, v3
  s_cmp_eq_u32 s13, 256
  s_cbranch_scc1 L_ichk_ok
  s_sub_u32 s12, s12, 1
  s_cmp_eq_u32 s12, 0
  s_cbranch_scc1 L_ichk_ok
  s_sleep 8
  buffer_load_dword v3, v2, s[28:31], 0 offen sc1
  s_waitcnt vmcnt(0)
  s_branch L_ichk
L_ichk_ok:""")

def OUTF(): return {0: '', 1: ' sc1', 2: ' nt', 3: ' sc0 sc1', 4: ' sc1 nt'}[O.outf]

def HFF(): return {0: ' sc1', 1: '', 2: ' nt', 3: ' sc0 sc1', 4: ' sc1 nt'}[O.hff]

def ATF(): return ' sc1' if O.atsc1 else ''

def px_clear(a, lbl, wadd):
    a(f'  s_cmp_eq_u32 s{S_CNT}, 6')
    a(f'  s_cbranch_scc0 {lbl}')
    g2_ids(a, 20, 21, 22, 23)
    a(f"""  s_lshl_b32 s16, s23, 16                ; tile*64K
  s_lshl_b32 s17, s20, 15
  s_add_u32 s16, s16, s17
  s_lshl_b32 s17, s{S_W}, 12
  s_add_u32 s16, s16, s17
  s_add_u32 s16, s16, {WS_PX + 4096 * wadd}
  s_add_u32 s16, s6, s16
  s_addc_u32 s17, s7, 0
  s_mov_b32 s18, 4096
  s_mov_b32 s19, 0x20000
  v_lshlrev_b32 v1, 4, v0
  v_mov_b32 v2, -1
  v_mov_b32 v3, -1
  v_mov_b32 v4, -1
  v_mov_b32 v5, -1""")
    for i in range(4):
        a(f'  buffer_store_dwordx4 v[2:5], v1, s[16:19], 0 offen offset:{i*1024} sc1')
    a.label(lbl)

def init_count(a):
    a(f'''  s_load_dwordx2 s[16:17], s[0:1], 64
  v_mov_b32 v2, 0
  v_mov_b32 v3, 1
  s_waitcnt lgkmcnt(0)
  s_mov_b32 s18, 256
  s_mov_b32 s19, 0x20000
  v_cmp_eq_u32 vcc, 0, v0
  s_and_saveexec_b64 s[20:21], vcc
  buffer_atomic_add v3, v2, s[16:19], 0 offen{ATF()}
  s_mov_b64 exec, s[20:21]''')

G2_RED = 6 * 16384
class G2R:
    ACC = 8
    BF = 72
    AF = 136
    VB = 168
    VA = 176
    VD0, VD1 = 68, 69
    LD0, LD1 = 177, 178
    VO = 179
    XR = 180
    VL = 188
S_KH, S_MT, S_NT, S_TILE, S_G = 44, 45, 46, 47, 61

def g2acc(b, t): return G2R.ACC + (b * 2 + t) * 4

def g2_bvoff(a, d0, d1, nt, mw):
    a(f'''  v_lshrrev_b32 v3, 4, v0                ; 0..3
  v_lshlrev_b32 v4, 1, v3
  v_and_b32 v2, 15, v0
  v_xor_b32 v6, v4, v2
  v_xor_b32 v2, 8, v6
  s_lshl_b32 s17, s{mw}, 3
  v_add_u32 v3, s17, v3                  ; p
  v_lshlrev_b32 v3, 11, v3               ; p*2048
  s_lshl_b32 s17, s{nt}, 8
  v_add_u32 v3, s17, v3
  v_lshl_add_u32 v{d0}, v6, 4, v3
  v_lshl_add_u32 v{d1}, v2, 4, v3
  v_add_u32 v{d1}, 8192, v{d1}           ; + 4 rows''')

def g2_bstate(a):
    g2_ids(a, 20, 21, 22, 23)
    a(f'''  s_lshr_b32 s19, s76, 2                 ; group g
  s_mov_b32 s64, s24
  s_mov_b32 s65, s25
  s_mov_b32 s66, {1024*2048}
  s_mov_b32 s67, 0x20000
  s_lshl_b32 s16, s20, 4
  s_lshl_b32 s17, s19, 1
  s_add_u32 s16, s16, s17
  s_lshl_b32 s73, s16, 16
  s_mov_b32 s70, {4 << 16}
  s_mov_b32 s72, {1 << 16}
  s_mov_b32 s68, 4
  s_mov_b32 s69, 0
  s_mul_i32 s16, s20, 56                 ; 7 * 8kh
  s_mul_i32 s17, s19, 7
  s_add_u32 s18, s16, s17
  s_lshl_b32 s80, s18, 16
  s_mul_i32 s17, s19, 3
  s_add_u32 s18, s16, s17
  s_add_u32 s18, s18, 1
  s_lshl_b32 s81, s18, 16
  s_mul_i32 s17, s19, 14
  s_add_u32 s18, s16, s17
  s_add_u32 s18, s18, 6
  s_lshl_b32 s82, s18, 16
  s_mul_i32 s17, s19, 49152
  s_lshl_b32 s18, s{S_MW}, 11
  s_add_u32 s74, s17, s18''')
    g2_bvoff(a, G2R.VD0, G2R.VD1, 22, S_MW)

G2_LATE = False
_BL = [0]
def g2_dmaB(a, slot):
    R = G2R
    d0, d1 = (R.LD0, R.LD1) if G2_LATE else (R.VD0, R.VD1)
    _BL[0] += 1; n = _BL[0]
    a(f'  s_add_u32 m0, s74, {slot*16384}')
    a(f'  s_add_u32 s75, s73, s72')
    a(f'  buffer_load_dwordx4 v{d0}, s[64:67], s73 offen lds')
    a(f'  s_add_u32 m0, s74, {slot*16384 + 1024}')
    a(f'  s_sub_u32 s68, s68, 1')
    a(f'  buffer_load_dwordx4 v{d1}, s[64:67], s73 offen lds')
    a(f'  s_add_u32 m0, s74, {slot*16384 + 8192}')
    a(f'  s_add_u32 s73, s73, s70')
    a(f'  buffer_load_dwordx4 v{d0}, s[64:67], s75 offen lds')
    a(f'  s_add_u32 m0, s74, {slot*16384 + 8192 + 1024}')
    a(f'  s_cmp_eq_u32 s68, 0')
    a(f'  buffer_load_dwordx4 v{d1}, s[64:67], s75 offen lds')
    a(f'''  s_cbranch_scc0 L_bo{n}
  s_add_u32 s69, s69, 1
  s_mov_b32 s64, s26
  s_mov_b32 s65, s27
  s_mov_b32 s66, {3584*2048}
  s_mov_b32 s73, s80
  s_mov_b32 s70, {14 << 16}
  s_mov_b32 s72, {3 << 16}
  s_mov_b32 s68, 4
  s_cmp_eq_u32 s69, 1
  s_cbranch_scc1 L_bo{n}
  s_mov_b32 s73, s81
  s_mov_b32 s70, {7 << 16}
  s_mov_b32 s72, {1 << 16}
  s_mov_b32 s68, 8
  s_cmp_eq_u32 s69, 2
  s_cbranch_scc1 L_bo{n}
  s_mov_b32 s73, s82
  s_mov_b32 s70, {28 << 16}
  s_mov_b32 s72, {7 << 16}
  s_mov_b32 s68, 2
  s_cmp_eq_u32 s69, 3
  s_cbranch_scc1 L_bo{n}
  s_mov_b32 s66, 0
  s_mov_b32 s68, 64
L_bo{n}:''')

def g2_decode(a):
    R = G2R
    g2_ids(a, S_KH, S_MT, S_NT, S_TILE)
    a(f'''  s_lshr_b32 s{S_G}, s76, 2              ; group
  s_and_b32 s19, s76, 3                  ; mw''')
    g2_bvoff(a, R.LD0, R.LD1, S_NT, 19)
    a(f'''  ; A voffset = (mw&1)*2048 + lane*16
  s_and_b32 s17, s19, 1
  s_lshl_b32 s17, s17, 11
  v_lshlrev_b32 v{R.VL}, 4, v0
  v_add_u32 v{R.VA}, s17, v{R.VL}
  v_lshrrev_b32 v3, 2, v0
  v_and_b32 v4, 7, v3
  v_and_b32 v2, 3, v0
  v_lshlrev_b32 v2, 3, v2
  v_lshl_add_u32 v2, v3, 8, v2
  s_mul_i32 s17, s{S_G}, 49152
  v_add_u32 v2, s17, v2''')
    for b in range(8):
        a(f'  v_xor_b32 v6, {b}, v4')
        a(f'  v_lshl_add_u32 v{R.VB+b}, v6, 5, v2')
    a(f'''  ; output offset: token = mt*128 + 32mw + c (+16t) ; col bytes = nt*256 + g*128 + kh*64
  s_lshl_b32 s16, s{S_MT}, 7
  s_lshl_b32 s17, s19, 5
  s_add_u32 s16, s16, s17
  v_and_b32 v3, 15, v0
  v_add_u32 v3, s16, v3
  v_lshlrev_b32 v3, 11, v3               ; token*2048
  s_lshl_b32 s17, s{S_NT}, 8
  s_lshl_b32 s18, s{S_G}, 7
  s_add_u32 s17, s17, s18
  s_lshl_b32 s18, s{S_KH}, 6
  s_add_u32 s17, s17, s18
  v_add_u32 v{R.VO}, s17, v3
  s_lshl_b32 s16, s{S_MT}, 1
  s_bfe_u32 s17, s76, 0x10001            ; (w>>1)&1
  s_add_u32 s16, s16, s17
  s_mul_i32 s16, s16, {144*4096}
  s_add_u32 s16, s16, {WS_HF}
  s_add_u32 s40, s6, s16
  s_addc_u32 s41, s7, 0
  s_mul_i32 s60, s{S_KH}, {72*4096}
  s_add_u32 s42, s60, {72*4096}
  s_mov_b32 s43, 0x20000
  s_lshl_b32 s16, s{S_G}, 13
  s_add_u32 s60, s60, s16                ; A soffset
  s_lshl_b32 s16, s{S_TILE}, 7
  s_lshl_b32 s17, s{S_KH}, 2
  s_add_u32 s33, s16, s17
  s_lshl_b32 s71, s{S_G}, 1''')

def g2_loadA(a, buf):
    R = G2R
    a('  s_add_u32 s58, s60, 4096')
    for st in range(2):
        so = 's60' if st == 0 else 's58'
        for t in range(2):
            a(f'  buffer_load_dwordx4 {vr(R.AF+16*buf+8*st+4*t,4)}, v{R.VA}, s[40:43], {so} offen offset:{t*1024}{HFF()}')
    a('  s_add_u32 s60, s60, 16384')

def g2_readB(a, slot):
    R = G2R
    for st in range(2):
        for b in range(8):
            for s_ in range(2):
                a(f'  ds_read_b64_tr_b16 {vr(R.BF+32*st+4*b+2*s_,2)}, v{R.VB+b} offset:{slot*16384 + st*8192 + s_*4096}')

def g2_loadphase(a, rslot, abuf, dslot):
    loadphase(a, lambda t: g2_readB(t, rslot), [lambda t: g2_loadA(t, abuf), lambda t: g2_dmaB(t, dslot)])

def g2_fix(a, buf):
    R = G2R
    a(f'  s_cmp_ge_u32 s71, 64')
    a(f'  s_cbranch_scc0 3f')
    for st in range(2):
        r = R.AF + 16 * buf + 8 * st
        a(f'  v_swap_b32 v{r+2}, v{r+4}')
        a(f'  v_swap_b32 v{r+3}, v{r+5}')
    a('3:')
    a('  s_add_u32 s71, s71, 4')

def g2_mfmas(a, buf):
    R = G2R
    g2_fix(a, buf)
    for st in range(2):
        for b in range(8):
            for t in range(2):
                mfma(a, g2acc(b, t), R.BF + 32 * st + 4 * b, R.AF + 16 * buf + 8 * st + 4 * t)

def g2_residual(a):
    R = G2R
    a(f'''  v_lshrrev_b32 v4, 4, v0                ; g
  v_lshl_add_u32 v2, v4, 3, v{R.VO}      ; + g*8
  v_add_u32 v3, 32768, v2''')
    for t in range(2):
        for bb in range(2):
            a(f'  buffer_load_dwordx2 {vr(R.XR+4*t+2*bb,2)}, v{2+t}, s[48:51], 0 offen offset:{bb*32}')

def red_addr(a):
    R = G2R
    a(f'  s_and_b32 s16, s76, 3')
    a(f'  s_lshl_b32 s16, s16, 13                ; mw*8K')
    a(f'  s_add_u32 s16, s16, {G2_RED}')
    a(f'  v_add_u32 v3, s16, v{R.VL}')

def red_write(a, send, wr):
    for i in range(8):
        a(f'  ds_write_b128 v3, {vr(g2acc(send + i // 2, i % 2), 4)} offset:{wr + i*1024}')

def red_read(a, keep, rd):
    for i in range(8):
        a(f'  ds_read_b128 {vr(104 + 4*i, 4)}, v3 offset:{rd + i*1024}')
    for i in range(8):
        a(f'  s_waitcnt lgkmcnt({7-i})')
        src = g2acc(keep + i // 2, i % 2)
        for q in range(4):
            a(f'  v_add_f32 v{72 + 4*i + q}, v{src + q}, v{104 + 4*i + q}')

def poll(a, lbl, srd_, voff, want_mask_all=True):
    a(f'''L_{lbl}:
  buffer_load_dword v3, v{voff}, s[{srd_}:{srd_+3}], 0 offen sc1
  s_waitcnt vmcnt(0)
  v_cmp_eq_u32 vcc, 1, v3
  s_cmp_eq_u64 vcc, exec
  s_cbranch_scc1 L_{lbl}_ok
  s_sub_u32 s62, s62, 1
  s_cmp_eq_u32 s62, 0
  s_cbranch_scc1 L_{lbl}_ok
  s_sleep 1
  s_branch L_{lbl}
L_{lbl}_ok:''')

def gen_g2(a):
    global G2_LATE
    G2_LATE = True
    R = G2R
    a.label('L_g2_entry')
    stamp(a, 4)
    if O.earlyE:
        a('  s_cmp_lt_u32 s76, 4')
        a('  s_cbranch_scc1 L_g2_e0')
        a('  s_barrier')
        a('L_g2_e0:')
    a('''  s_load_dwordx2 s[4:5], s[0:1], 0       ; x
  s_load_dwordx4 s[8:11], s[0:1], 56''')
    g2_decode(a)
    for r in range(R.ACC, R.ACC + 64):
        a(f'  v_mov_b32 v{r}, 0')
    a('  s_waitcnt lgkmcnt(0)')
    srd(a, 48, 4, 5, 2048 * 2048)
    srd(a, 52, 8, 9, 2048 * 2048)
    flag_srd(a, 28)
    a(f'''  ; flags of the 16 producers of my K half: all done at v189, o done at v189 + 1024
  s_lshr_b32 s16, s{S_MT}, 1
  s_lshl_b32 s16, s16, 7
  s_lshl_b32 s17, s{S_KH}, 6
  s_add_u32 s16, s16, s17
  s_add_u32 s16, s16, {FLAG_G1}
  v_and_b32 v4, 15, v0
  v_lshlrev_b32 v4, 2, v4
  v_add_u32 v189, s16, v4
  s_cmp_lg_u32 s76, 0
  s_cbranch_scc1 L_g2_go
  s_mov_b32 s62, 0x40000
  v_add_u32 v4, 1024, v189''')
    poll(a, 'g2_p1', 28, 4)
    a.label('L_g2_go')
    if O.earlyE:
        a('  s_cmp_ge_u32 s76, 4')
        a('  s_cbranch_scc1 L_g2_e1')
        a('  s_barrier')
        a('L_g2_e1:')
    else:
        a('  s_barrier')
    stamp(a, 6)
    g2_loadA(a, 0)
    a(f'  s_cmp_eq_u32 s{S_G}, 0')
    a(f'  s_cbranch_scc0 L_g2_Y')
    g2_loadphase(a, 0, 1, 2)
    a('  s_waitcnt vmcnt(8) lgkmcnt(0)')
    a('  s_barrier')
    stamp(a, 7)
    a('  s_mov_b32 s57, 3')
    a.label('L_g2_xl')
    for q in range(6):
        g2_mfmas(a, q % 2)
        a('  s_barrier')
        if q == 5:
            a('  s_cmp_eq_u32 s57, 1')
            a('  s_cbranch_scc1 L_g2_xlast')
        if q == 1:
            a(f'''  s_cmp_eq_u32 s57, 3
  s_cbranch_scc0 L_g2_nc1
  s_cmp_eq_u32 s76, 0
  s_cbranch_scc0 L_g2_nc1
  buffer_load_dword v3, v189, s[28:31], 0 offen sc1
L_g2_nc1:''')
        g2_loadphase(a, (q + 1) % 3, q % 2, q % 3)
        a('  s_waitcnt vmcnt(8) lgkmcnt(0)')
        if q == 1:
            a(f'''  s_cmp_eq_u32 s57, 3
  s_cbranch_scc0 L_g2_nc2
  s_cmp_eq_u32 s76, 0
  s_cbranch_scc0 L_g2_nc2
  v_cmp_eq_u32 vcc, 1, v3
  s_cmp_eq_u64 vcc, exec
  s_cbranch_scc1 L_g2_nc2
  s_mov_b32 s62, 0x40000''')
            poll(a, 'g2_p3', 28, 189)
            a('L_g2_nc2:')
        a('  s_barrier')
    a(f'  s_sub_u32 s57, s57, 1')
    a(f'  s_branch L_g2_xl')
    a.label('L_g2_xlast')
    stamp(a, 8)
    g2_residual(a)
    red_addr(a)
    red_write(a, send=4, wr=0)
    a('  s_waitcnt lgkmcnt(0)')
    a('  s_barrier')
    red_read(a, keep=0, rd=32768)
    a(f'  s_branch L_g2_x')
    a.label('L_g2_Y')
    a('  s_waitcnt vmcnt(4)')
    a('  s_barrier')
    stamp(a, 7)
    a('  s_mov_b32 s57, 3')
    a.label('L_g2_yl')
    for q in range(6):
        if q == 5:
            a('  s_cmp_eq_u32 s57, 1')
            a('  s_cbranch_scc1 L_g2_ylast')
        g2_loadphase(a, q % 3, (q + 1) % 2, (q + 2) % 3)
        if q == 0:
            a(f'''  s_cmp_eq_u32 s57, 3
  s_cbranch_scc0 L_g2_nf
  s_cmp_eq_u32 s76, 4
  s_cbranch_scc0 L_g2_nf
  s_lshl_b32 s12, s{S_MI}, 7
  s_lshl_b32 s13, s{S_NJ}, 2
  s_add_u32 s12, s12, s13
  s_add_u32 s12, s12, {FLAG_G1}
  v_mov_b32 v2, s12
  v_mov_b32 v3, 1
  s_mov_b64 exec, 1
  buffer_store_dword v3, v2, s[28:31], 0 offen sc1
  s_mov_b64 exec, -1
L_g2_nf:''')
        a('  s_waitcnt vmcnt(8) lgkmcnt(0)')
        a('  s_barrier')
        g2_mfmas(a, q % 2)
        a('  s_barrier')
    a(f'  s_sub_u32 s57, s57, 1')
    a(f'  s_branch L_g2_yl')
    a.label('L_g2_ylast')
    g2_readB(a, 17 % 3)
    g2_residual(a)
    red_addr(a)
    a('  s_waitcnt vmcnt(4) lgkmcnt(0)')
    a('  s_barrier')
    g2_fix(a, 1)
    for st in range(2):
        for b in range(4):
            for t in range(2):
                mfma(a, g2acc(b, t), R.BF + 32 * st + 4 * b, R.AF + 16 + 8 * st + 4 * t)
    k = 0
    for st in range(2):
        for b in range(4, 8):
            for t in range(2):
                mfma(a, g2acc(b, t), R.BF + 32 * st + 4 * b, R.AF + 16 + 8 * st + 4 * t)
                k += 1
                if 4 <= k < 12:
                    i = k - 4
                    a(f'  ds_write_b128 v3, {vr(g2acc(i // 2, i % 2), 4)} offset:{32768 + i*1024}')
    stamp(a, 8)
    a('  s_waitcnt lgkmcnt(0)')
    a('  s_barrier')
    red_read(a, keep=4, rd=0)
    a.label('L_g2_x')
    a(f'''  s_lshl_b32 s16, s{S_TILE}, 16          ; tile*64K
  s_add_u32 s16, s16, {WS_PX}
  s_add_u32 s40, s6, s16
  s_addc_u32 s41, s7, 0
  s_mov_b32 s42, 65536
  s_mov_b32 s43, 0x20000
  s_xor_b32 s16, s{S_KH}, 1
  s_lshl_b32 s16, s16, 15
  s_lshl_b32 s17, s76, 12
  s_add_u32 s60, s16, s17
  s_lshl_b32 s16, s{S_KH}, 15
  s_add_u32 s63, s16, s17
  s_cmp_eq_u32 s{S_KH}, 0
  s_cbranch_scc0 L_g2_s1''')
    for i in range(4):
        a(f'  buffer_store_dwordx4 {vr(88 + 4*i, 4)}, v{R.VL}, s[40:43], s60 offen offset:{i*1024} sc1')
    for i in range(16):
        a(f'  v_mov_b32 v{8 + i}, v{72 + i}')
    a(f'  s_branch L_g2_s2')
    a.label('L_g2_s1')
    for i in range(4):
        a(f'  buffer_store_dwordx4 {vr(72 + 4*i, 4)}, v{R.VL}, s[40:43], s60 offen offset:{i*1024} sc1')
    for i in range(16):
        a(f'  v_mov_b32 v{8 + i}, v{88 + i}')
    a.label('L_g2_s2')
    stamp(a, 9)
    a(f'''  v_lshrrev_b32 v4, 4, v0
  v_and_b32 v5, 1, v4
  v_lshlrev_b32 v5, 5, v5
  v_lshrrev_b32 v4, 1, v4
  v_lshl_add_u32 v5, v4, 4, v5
  v_add_u32 v5, v{R.VO}, v5
  v_add_u32 v6, 32768, v5
  s_waitcnt vmcnt(4)''')
    for i in range(4):
        bb, t = i // 2, i % 2
        xr = R.XR + 4 * t + 2 * bb
        a(f'  v_lshlrev_b32 v40, 16, v{xr}')
        a(f'  v_and_b32 v41, 0xffff0000, v{xr}')
        a(f'  v_lshlrev_b32 v42, 16, v{xr+1}')
        a(f'  v_and_b32 v43, 0xffff0000, v{xr+1}')
        for q in range(4):
            a(f'  v_add_f32 v{8+4*i+q}, v{8+4*i+q}, v{40+q}')
    a('  s_mov_b32 s62, 0x40000')
    a.label('L_g2_rx')
    for i in range(4):
        a(f'  buffer_load_dwordx4 {vr(24 + 4*i, 4)}, v{R.VL}, s[40:43], s63 offen offset:{i*1024} sc1')
    a('  s_waitcnt vmcnt(0)')
    a('  v_max3_u32 v40, v24, v25, v26')
    for i in range(27, 39, 2):
        a(f'  v_max3_u32 v40, v40, v{i}, v{i+1}')
    a('  v_max_u32 v40, v40, v39')
    a('''  v_cmp_eq_u32 vcc, -1, v40
  s_cmp_eq_u64 vcc, 0
  s_cbranch_scc1 L_g2_rxok
  s_sub_u32 s62, s62, 1
  s_cmp_eq_u32 s62, 0
  s_cbranch_scc1 L_g2_rxok
  s_sleep 1
  s_branch L_g2_rx
L_g2_rxok:''')
    stamp(a, 10)
    for i in range(4):
        bb, t = i // 2, i % 2
        for q in range(4):
            a(f'  v_add_f32 v{8+4*i+q}, v{8+4*i+q}, v{24+4*i+q}')
        d = 44 + 4 * t + 2 * bb
        a(f'  v_cvt_pk_bf16_f32 v{d}, v{8+4*i}, v{8+4*i+1}')
        a(f'  v_cvt_pk_bf16_f32 v{d+1}, v{8+4*i+2}, v{8+4*i+3}')
    for t in range(2):
        r = 44 + 4 * t
        a(f'  v_permlane16_swap_b32 v{r}, v{r+2}')
        a(f'  v_permlane16_swap_b32 v{r+1}, v{r+3}')
        a(f'  buffer_store_dwordx4 {vr(r,4)}, v{5+t}, s[52:55], 0 offen{OUTF()}')
    stamp(a, 11)
    stamp_real(a, 63)
    stamp_flush(a)
    a('  s_endpgm')
    a.label('L_code_end')

def gen_main(a, name):
    kernel_head(a, name)
    a(f'''  s_cmp_ge_u32 s2, 256
  s_cbranch_scc1 L_main_end
  s_load_dwordx2 s[84:85], s[0:1], 48    ; wd
  s_load_dwordx2 s[86:87], s[0:1], 16    ; wo
  s_load_dwordx2 s[36:37], s[0:1], 0     ; x
  s_load_dwordx2 s[4:5], s[0:1], 8       ; wqkv
  s_load_dwordx4 s[8:11], s[0:1], 32
  s_load_dwordx2 s[6:7], s[0:1], 72      ; ws''')
    if O.stamps:
        a('  v_mov_b32 v7, 0')
        stamp_real(a, 62)
        stamp(a, 0)
    a(f'''  v_lshrrev_b32 v1, 6, v0
  v_and_b32 v0, 63, v0                   ; lane
  v_readfirstlane_b32 s{S_W}, v1
  s_waitcnt lgkmcnt(0)''')
    stats_loads(a)
    a(f'''  s_and_b32 s3, s2, 7
  s_lshr_b32 s12, s2, 3
  s_and_b32 s13, s12, 3
  s_lshl_b32 s3, s3, 2
  s_add_u32 s{S_NJ}, s3, s13
  s_lshr_b32 s{S_MI}, s12, 2             ; mi = t>>2
  s_and_b32 s{S_MW}, s{S_W}, 3
  s_lshl_b32 s24, s{S_NJ}, 6
  s_lshr_b32 s12, s{S_NJ}, 1
  s_and_b32 s13, s{S_NJ}, 1
  s_mul_i32 s12, s12, 448                ; 14a*32 bytes
  s_mul_i32 s14, s13, 192
  s_add_u32 s25, s12, s14                ; chunks 0..11
  s_lshl_b32 s14, s13, 5
  s_add_u32 s26, s12, s14
  s_add_u32 s26, s26, {12*32 - 12*16}
  s_cmp_ge_u32 s{S_W}, 4
  s_cbranch_scc1 L_ysetup
  v_and_b32 v2, 15, v0                   ; c
  v_lshrrev_b32 v3, 4, v0                ; g
  v_lshrrev_b32 v4, 1, v2
  v_xor_b32 v3, v3, v4                   ; g ^ (c>>1)
  v_lshlrev_b32 v3, 4, v3
  v_lshl_add_u32 v2, v2, 7, v3           ; c*128 + chunk*16
  s_lshl_b32 s12, s{S_MW}, 13
  v_add_u32 v{V_A0}, s12, v2
  v_xor_b32 v{V_A1}, 64, v{V_A0}
  v_add_u32 v{V_H0}, 32768, v2
  v_xor_b32 v{V_H1}, 64, v{V_H0}
  v_lshrrev_b32 v3, 2, v0                ; 4g + r
  v_and_b32 v4, 3, v0                    ; cq
  v_lshlrev_b32 v4, 3, v4                ; cq*8
  v_mul_u32_u24 v5, 224, v3
  v_add_u32 v5, v5, v4
  v_add_u32 v{V_G0}, {OFF_G}, v5
  v_add_u32 v{V_G1}, {2*STAGE}, v{V_G0}
  v_mul_u32_u24 v5, 192, v3
  v_add_u32 v5, v5, v4
  v_add_u32 v5, {OFF_Q}, v5
  v_bfe_u32 v6, v0, 4, 1                 ; g&1
  v_lshlrev_b32 v6, 5, v6                ; (g&1)*32
  v_add_u32 v{V_QE0}, v5, v6
  v_sub_u32 v{V_QO0}, v5, v6
  v_add_u32 v{V_QE1}, {2*STAGE}, v{V_QE0}
  v_add_u32 v{V_QO1}, {2*STAGE}, v{V_QO0}
  s_waitcnt lgkmcnt(0)
  s_cmp_eq_u32 s{S_MW}, 0
  s_cbranch_scc1 L_X0
  s_cmp_eq_u32 s{S_MW}, 1
  s_cbranch_scc1 L_X1
  s_cmp_eq_u32 s{S_MW}, 2
  s_cbranch_scc1 L_X2
  s_branch L_X3
L_main_end:
  s_endpgm
L_ysetup:
  v_and_b32 v2, 15, v0                   ; c
  v_lshrrev_b32 v3, 4, v0                ; g
  v_lshrrev_b32 v4, 1, v2
  v_xor_b32 v3, v3, v4                   ; g ^ (c>>1)
  v_lshlrev_b32 v3, 4, v3
  v_lshl_add_u32 v2, v2, 7, v3           ; c*128 + chunk*16
  s_lshl_b32 s12, s{S_MW}, 13
  v_add_u32 v{V_A0}, s12, v2
  v_xor_b32 v{V_A1}, 64, v{V_A0}
  v_add_u32 v{V_H0}, 32768, v2
  v_xor_b32 v{V_H1}, 64, v{V_H0}
  v_lshrrev_b32 v3, 2, v0                ; 4g + r
  v_and_b32 v4, 3, v0                    ; cq
  v_lshlrev_b32 v4, 3, v4                ; cq*8
  v_mul_u32_u24 v5, 224, v3
  v_add_u32 v5, v5, v4
  v_add_u32 v{V_G0}, {OFF_G}, v5
  v_add_u32 v{V_G1}, {2*STAGE}, v{V_G0}
  s_waitcnt lgkmcnt(0)''')
    srd(a, S_SRD, A_PTR, A_PTR + 1, 4 << 20, A_OFF)
    a(f'''  s_mov_b32 s{S_SOFF}, 0
  s_lshl_b32 s12, s{S_MI}, 8
  s_lshl_b32 s13, s{S_MW}, 6
  s_add_u32 s13, s13, s12
  v_lshrrev_b32 v1, 3, v0                ; r
  v_and_b32 v2, 7, v0
  v_lshrrev_b32 v3, 1, v1
  v_xor_b32 v3, v2, v3
  v_add_u32 v4, s13, v1
  v_lshlrev_b32 v4, 11, v4
  v_lshl_add_u32 v{V_OFF}, v3, 4, v4
  v_xor_b32 v{V_OFF+1}, 64, v{V_OFF}
  s_lshl_b32 s{S_LDS}, s{S_MW}, 13
  s_lshl_b32 s13, s{S_MW}, 2
  v_add_u32 v1, s13, v1                  ; hr
  v_lshrrev_b32 v3, 1, v1
  v_and_b32 v3, 7, v3
  v_xor_b32 v3, v2, v3
  s_sub_u32 s12, s12, 16
  v_add_u32 v4, s12, v1
  v_max_i32 v4, 0, v4
  v_lshlrev_b32 v4, 11, v4
  v_lshl_add_u32 v{V_OFF+2}, v3, 4, v4
  s_lshl_b32 s13, s{S_MW}, 9
  s_add_u32 s{S_LDS+1}, s13, 32768
  s_mov_b32 s13, 0xffff0000
  s_cmp_eq_u32 s{S_MW}, 0
  s_cselect_b32 s62, s13, -1
  s_mov_b32 s63, 0''')
    ypf_setup(a)
    a('  s_branch L_Y')
    for mw in range(4): gen_x(a, mw)
    gen_y(a)
    gen_xepi(a)
    gen_yepi(a)
    gen_dry_ret(a)
    gen_g2(a)

KN = 'parallel_sum__sliding_local_dilated__geglu_ffn__prompt_kernel'
def gen_all():
    a = Asm()
    a(HEADER.rstrip('\n'))
    a(f'; @launch grid=(256,1,1) block=(512,1,1) lds={MAIN_LDS}')
    a(''';
; launch, and one arrival counter in d_debug[0] that tells when all of them have been cleared.''')
    a('.amdgcn_target "amdgcn-amd-amdhsa--gfx950"')
    a('.text')
    KN_ = KN
    gen_main(a, KN_)
    a('.section .rodata,"a"')
    kernel_desc(a, KN_, vgpr=256, sgpr=100)
    return hazard.fix(a.text(), verbose=False)

if __name__ == '__main__':
    for kv in sys.argv[1:]:
        k, v = kv.split('=')
        setattr(O, k, int(v) if v.lstrip('-').isdigit() else v)
    sys.stdout.write(gen_all())
```

```python
import sys, struct
from asmlib import *
import hazard, sched

WS_XN = 0
WS_HF = 4 << 20
HF_BYTES = 144 * 128 * 1024
WS_PX = 64 << 20
WS_FLAG = 100 << 20
FLAG_G1 = 16384
WS_STAMP = 60 << 20
class O:
    stamps = 0
    pf = 1
    only = ''
    lnsleep = 8
    lntouch = 0
    yzero = 0
    xearly = 0
    ilpct = 100
    ydma = 0
    prio = 0
    g2pf = 0
    spread = 1
    thinclr = 1
    x_noclr = 0
    x_l2hit = 0
    align = 3
    align2 = 3
    alignl = 6
    w2early = 1
    earlyE = 1
    pfs = 1
    pfwait = 0
    csplain = 0
    g2map = 1
    pxplain = 0
    pf00 = 0
    first = 3
    latres = 1
    x_sameA = 0
    x_sameW = 0
    x_noA = 0
    x_noW = 0
    early = 0
    p1 = 1
    p2 = 2
    dry = 0
    hff = 0
    sched = 1
    outf = 0
    nopf = 0
    codepf = 0
    now2pf = 0
    dbgcs = 0
    inline_ln = 0
    lnpf = 0
    atsc1 = 0
    lnnopoll = 0

def stamp(a, i):
    if O.stamps:
        a('  s_memtime s[98:99]')
        a('  s_memrealtime s[96:97]')
        a('  s_waitcnt lgkmcnt(0)')
        a(f'  v_writelane_b32 v7, s98, {i}')
        a(f'  v_writelane_b32 v7, s96, {32+i}')
def stamp_real(a, i):
    if O.stamps:
        a('  s_memrealtime s[98:99]')
        a('  s_waitcnt lgkmcnt(0)')
        a(f'  v_writelane_b32 v7, s98, {i}')
def stamp_flush(a):
    if not O.stamps: return
    if O.stamps == 3:
        a('  s_cmp_lg_u32 s76, 0')
        a('  s_cbranch_scc1 L_st_skip')
        a('  s_mov_b64 s[20:21], exec')
        a('  s_mov_b64 exec, 1')
        for w, (lane, inv) in enumerate([(32, True), (32, False), (34, False), (35, False), (36, False), (37, False), (38, False), (40, False), (41, False), (42, False), (43, False)]):
            a(f'  v_readlane_b32 s12, v7, {lane}')
            a('  s_nop 3')
            if inv: a('  s_not_b32 s12, s12')
            a(f'  v_mov_b32 v2, s12')
            a(f'  v_mov_b32 v3, {16 + 4*w}')
            a(f'  buffer_atomic_umax v2, v3, s[28:31], 0 offen sc1')
        a('  s_mov_b64 exec, s[20:21]')
        a('L_st_skip:')
        return
    a(f'''  s_lshl_b32 s12, s2, 3
  s_add_u32 s12, s12, s76
  s_lshl_b32 s12, s12, 8
  s_add_u32 s12, s12, {WS_STAMP}
  s_add_u32 s16, s6, s12
  s_addc_u32 s17, s7, 0
  s_mov_b32 s18, 256
  s_mov_b32 s19, 0x20000
  v_lshlrev_b32 v1, 2, v0
  buffer_store_dword v7, v1, s[16:19], 0 offen''')

def capture(fn, *args):
    t = Asm(); fn(t, *args); return t.l

def split_vmem(lines):
    chunks = []; cur = []
    for l in lines:
        cur.append(l)
        if l.strip().startswith('buffer_load') and not any(x.strip().startswith('s_cbranch_scc1 L_cpf') for x in cur):
            chunks.append(cur); cur = []
    if cur:
        if chunks: chunks[-1] += cur
        else: chunks.append(cur)
    return chunks

def interleave(a, vm_chunks, reads, lead=0):
    n = len(vm_chunks)
    per = len(reads) * O.ilpct / 100.0 / float(n)
    k = 0
    for i, ch in enumerate(vm_chunks):
        for l in ch: a(l)
        upto = int(round(per * (i + 1)))
        for l in reads[k:upto]: a(l)
        k = upto
    for l in reads[k:]: a(l)

def srd(a, s, lo, hi, nbytes, add=0):
    if add:
        a(f'  s_add_u32 s{s}, s{lo}, {add}')
        a(f'  s_addc_u32 s{s+1}, s{hi}, 0')
    else:
        a(f'  s_mov_b32 s{s}, s{lo}')
        a(f'  s_mov_b32 s{s+1}, s{hi}')
    a(f'  s_mov_b32 s{s+2}, {nbytes}')
    a(f'  s_mov_b32 s{s+3}, 0x20000')

def allreduce16(a, v, t, op):
    a(f'  v_mov_b32 v{t}, v{v}')
    a(f'  v_permlane16_swap_b32 v{v}, v{t}')
    a(f'  {op} v{v}, v{v}, v{t}')
    a(f'  v_mov_b32 v{t}, v{v}')
    a(f'  v_permlane32_swap_b32 v{v}, v{t}')
    a(f'  {op} v{v}, v{v}, v{t}')

def gen_ln(a, name):
    kernel_head(a, name)
    a(f'''  s_cmp_ge_u32 s2, 256
  s_cbranch_scc1 L_ln_end
  s_cmp_ge_u32 s2, 128
  s_cbranch_scc1 L_ln_end
  s_load_dwordx2 s[4:5], s[0:1], 0
  s_load_dwordx2 s[6:7], s[0:1], 72
  v_lshrrev_b32 v1, 6, v0
  v_and_b32 v0, 63, v0
  v_readfirstlane_b32 s20, v1            ; wave 0..3
  v_and_b32 v2, 15, v0                   ; c
  v_lshrrev_b32 v3, 4, v0                ; g
  s_lshl_b32 s3, s2, 4
  v_add_u32 v4, s3, v2                   ; row
  v_lshlrev_b32 v4, 11, v4               ; row*2048
  v_lshl_add_u32 v4, v3, 4, v4           ; + g*16
  s_lshl_b32 s21, s20, 9
  v_add_u32 v4, s21, v4                  ; + w*512
  s_waitcnt lgkmcnt(0)''')
    srd(a, 8, 4, 5, 2048 * 2048)
    srd(a, 12, 6, 7, 4 << 20, WS_XN)
    for i in range(8):
        a(f'  buffer_load_dwordx4 {vr(8+4*i,4)}, v4, s[8:11], 0 offen offset:{i*64}')
    a(f'''  v_lshlrev_b32 v5, 2, v2                ; c*4
  s_lshl_b32 s21, s20, 6
  v_add_u32 v6, s21, v5                  ; w*64 + c*4''')
    for i in range(8):
        a(f'  s_waitcnt vmcnt({7-i})')
        for j in range(4):
            r = 8 + 4 * i + j
            a(f'  v_lshlrev_b32 v{64+8*i+2*j}, 16, v{r}')
            a(f'  v_and_b32 v{64+8*i+2*j+1}, 0xffff0000, v{r}')
    def tree(dst, term):
        for q in range(4):
            term(40 + q, 64 + q, True)
        for i in range(4, 64):
            term(40 + i % 4, 64 + i, False)
        a('  v_add_f32 v40, v40, v41')
        a('  v_add_f32 v42, v42, v43')
        a(f'  v_add_f32 v{dst}, v40, v42')
    def t_sum(acc_, r, first):
        a(f'  v_mov_b32 v{acc_}, v{r}' if first else f'  v_add_f32 v{acc_}, v{acc_}, v{r}')
    def t_sq(acc_, r, first):
        a(f'  v_mul_f32 v{acc_}, v{r}, v{r}' if first else f'  v_fmac_f32 v{acc_}, v{r}, v{r}')
    tree(44, t_sum)
    allreduce16(a, 44, 45, 'v_add_f32')
    a('''  ds_write_b32 v6, v44
  s_waitcnt lgkmcnt(0)
  s_barrier
  ds_read_b32 v46, v5
  ds_read_b32 v47, v5 offset:64
  ds_read_b32 v48, v5 offset:128
  ds_read_b32 v49, v5 offset:192
  s_waitcnt lgkmcnt(0)
  v_add_f32 v46, v46, v47
  v_add_f32 v48, v48, v49
  v_add_f32 v46, v46, v48
  v_mul_f32 v46, 0x3a800000, v46         ; mean''')
    for i in range(64):
        a(f'  v_sub_f32 v{64+i}, v{64+i}, v46')
    tree(44, t_sq)
    allreduce16(a, 44, 45, 'v_add_f32')
    a('''  ds_write_b32 v6, v44 offset:256
  s_waitcnt lgkmcnt(0)
  s_barrier
  ds_read_b32 v46, v5 offset:256
  ds_read_b32 v47, v5 offset:320
  ds_read_b32 v48, v5 offset:384
  ds_read_b32 v49, v5 offset:448
  s_waitcnt lgkmcnt(0)
  v_add_f32 v46, v46, v47
  v_add_f32 v48, v48, v49
  v_add_f32 v46, v46, v48
  v_mov_b32 v47, 0x3727c5ac              ; 1e-5
  v_fmac_f32 v47, 0x3a800000, v46
  v_rsq_f32 v46, v47
''')
    for i in range(8):
        for j in range(8):
            a(f'  v_mul_f32 v{64+8*i+j}, v{64+8*i+j}, v46')
        for j in range(4):
            a(f'  v_cvt_pk_bf16_f32 v{8+4*i+j}, v{64+8*i+2*j}, v{64+8*i+2*j+1}')
        a(f'  buffer_store_dwordx4 {vr(8+4*i,4)}, v4, s[12:15], 0 offen offset:{i*64}')
    a.label('L_ln_end')
    a('  s_endpgm')

ASLOT = 34816
WBASE = 2 * ASLOT
STAGE = 20480
OFF_Q = WBASE
OFF_G = OFF_Q + 6144
OFF_U = OFF_G + 7168
MAIN_LDS = 163840
A_PTR, A_OFF = 36, 0
WS_STATS = 0
STATS_L = 151552
CS_L = STATS_L + 4352
CNT_L = CS_L + 1280
XF_L = CNT_L + 4
XCC_OFF = FLAG_G1 + 4096
V_CS = 84
WS_CSG = 1 << 20
S_DYN = 38
EX = 98304
V_X, V_XH, V_W, V_OFF = 8, 24, 28, 68
V_A0, V_A1, V_H0, V_H1, V_QE0, V_QE1, V_QO0, V_QO1, V_G0, V_G1 = range(73, 83)
V_PF, V_PFD, V_PFT = 83, 6, 5
V_ACCH, V_ACC = 92, 96
S_SRD, S_SOFF, S_STR, S_LDS, S_CNT = 40, 60, 65, 70, 75
S_W, S_MW, S_NJ, S_MI = 76, 77, 78, 79

def acc(b, t): return V_ACC + (b * 4 + t) * 4

def mfma(a, d, x, y, c=None):
    cc = vr(d, 4) if c is None else c
    a(f'  v_mfma_f32_16x16x32_bf16 {vr(d,4)}, {vr(x,4)}, {vr(y,4)}, {cc}')

def x_mfmas(mw):
    l = []
    hb = [2, 3, 4, 5][mw]
    w = V_W + 4 * hb
    l.append((V_ACCH, V_XH, w) if hb in (4, 5) else (V_ACCH, w, V_XH))
    for b in (2, 3, 4, 5, 0, 1, 6, 7, 8, 9):
        for t in range(4):
            w = V_W + 4 * b; x = V_X + 4 * t
            l.append((acc(b, t), x, w) if b in (4, 5) else (acc(b, t), w, x))
    l.insert(20, (V_CS, V_W + 4 * mw if mw < 2 else V_CS + 4, V_XH))
    return l

def y_mfmas():
    return [(acc(b, t), V_W + 4 * b, V_X + 4 * t) for b in range(10) for t in range(4)]

def x_reads(a, st, mw):
    pair, sp = st >> 1, (st & 1) * STAGE
    vA = [V_A0, V_A1][st & 1]; vH = [V_H0, V_H1][st & 1]; asl = (st >> 1) * ASLOT
    vQE = [V_QE0, V_QE1][pair]; vQO = [V_QO0, V_QO1][pair]; vG = [V_G0, V_G1][pair]
    for t in range(4):
        a(f'  ds_read_b128 {vr(V_X+4*t,4)}, v{vA} offset:{asl + t*2048}')
    a(f'  ds_read_b128 {vr(V_XH,4)}, v{vH} offset:{asl}')
    for b in range(6):
        base = vQE if b % 2 == 0 else vQO
        for s in range(2):
            a(f'  ds_read_b64_tr_b16 {vr(V_W+4*b+2*s,2)}, v{base} offset:{sp + s*16*192 + b*32}')
    for i, (reg, blk) in enumerate([(0, 0), (0, 1), (1, 0), (1, 1)]):
        b = 6 + i
        for s in range(2):
            a(f'  ds_read_b64_tr_b16 {vr(V_W+4*b+2*s,2)}, v{vG} offset:{sp + reg*7168 + s*16*224 + blk*32}')
    if mw >= 2:
        a(f'  v_add_u32 v1, s{S_DYN}, v{vG}')
        for s in range(2):
            a(f'  ds_read_b64_tr_b16 {vr(V_CS+4+2*s,2)}, v1 offset:{sp + s*16*224}')

def y_reads(a, st):
    pair, sp = st >> 1, (st & 1) * STAGE
    vA = [V_A0, V_A1][st & 1]; vG = [V_G0, V_G1][pair]; asl = (st >> 1) * ASLOT
    for t in range(4):
        a(f'  ds_read_b128 {vr(V_X+4*t,4)}, v{vA} offset:{asl + t*2048}')
    for i in range(10):
        reg, blk = i // 5, 2 + i % 5
        for s in range(2):
            a(f'  ds_read_b64_tr_b16 {vr(V_W+4*i+2*s,2)}, v{vG} offset:{sp + reg*7168 + s*16*224 + blk*32}')

def x_dma(a, st):
    for j in range(5):
        a(f'  s_add_u32 m0, s{S_LDS+j}, {st*STAGE}')
        a(f'  s_nop 0')
        a(f'  buffer_load_dwordx4 v{V_OFF+j}, {sr(S_SRD+4*j,4)}, s{S_SOFF+j} offen lds')
        if not O.x_sameW: a(f'  s_add_u32 s{S_SOFF+j}, s{S_SOFF+j}, s{S_STR+j}')

def y_dma(a, slot):
    for j in range(8):
        a(f'  s_add_u32 m0, s{S_LDS}, {slot*ASLOT + j*1024}')
        a(f'  s_add_u32 s61, s{S_SOFF}, {j*16384}')
        a(f'  buffer_load_dwordx4 v{V_OFF + (j & 1)}, {sr(S_SRD,4)}, s61 offen lds')
    a(f'  s_add_u32 m0, s{S_LDS+1}, {slot*ASLOT}')
    a(f'  s_mov_b64 exec, s[62:63]')
    a(f'  buffer_load_dwordx4 v{V_OFF+2}, {sr(S_SRD,4)}, s{S_SOFF} offen lds')
    a(f'  s_mov_b64 exec, -1')
    if not O.x_sameA: a(f'  s_add_u32 s{S_SOFF}, s{S_SOFF}, 128')

def loadphase(a, reads, vm):
    if O.align2: a(f'  .p2align {O.align2}')
    if O.prio == 1: a('  s_setprio 1')
    if O.prio == 2: a('  s_setprio 0')
    r = capture(reads)
    v = []
    for f in vm: v += split_vmem(capture(f))
    if v: interleave(a, v, r)
    else:
        for l in r: a(l)

def al(a):
    if O.align: a(f'  .p2align {O.align}')

def compute(a, ms, waitv, first=False):
    if O.prio == 1: a('  s_setprio 0')
    if O.prio == 2: a('  s_setprio 1')
    al(a)
    for (d, x, y) in ms:
        mfma(a, d, x, y, '0' if first else None)
    if waitv is not None: a(f'  s_waitcnt vmcnt({waitv})')

def compute_bar(a, ms, waitv):
    e = O.early
    if not e:
        compute(a, ms, waitv); a('  s_barrier'); return
    a(f'  s_setprio {O.p1}')
    for (d, x, y) in ms[:-e]: mfma(a, d, x, y)
    a(f'  s_setprio {O.p2}')
    if waitv is not None: a(f'  s_waitcnt vmcnt({waitv})')
    a('  s_barrier')
    for (d, x, y) in ms[-e:]: mfma(a, d, x, y)
    a('  s_setprio 0')

def x_setup(a, mw):
    for j in range(5):
        d = 5 * mw + j
        s_ = S_SRD + 4 * j
        if d < 6:
            part, base, lds, nrec, magic, W, rs = d, 4, OFF_Q, 1024*6144, 43691, 12, 6144
        elif d < 13:
            part, base, lds, nrec, magic, W, rs = d-6, 8, OFF_G, 1024*7168, 37450, 14, 7168
        else:
            part, base, lds, nrec, magic, W, rs = d-13, 10, OFF_U, 1024*7168, 37450, 14, 7168
        a(f'''  ; slot {j}: d={d} part={part}
  s_mov_b32 s{s_}, s{base}
  s_mov_b32 s{s_+1}, s{base+1}
  s_mov_b32 s{s_+2}, {nrec}
  s_mov_b32 s{s_+3}, 0x20000
  s_mov_b32 s{S_LDS+j}, {lds + part*1024}
  s_mov_b32 s{S_STR+j}, {rs*32}
  s_mov_b32 s{S_SOFF+j}, 0
  v_add_u32 v1, {part*64}, v0            ; f
  v_mul_u32_u24 v2, {magic}, v1
  v_lshrrev_b32 v2, 19, v2               ; p
  v_mul_u32_u24 v3, {W}, v2
  v_sub_u32 v3, v1, v3                   ; c''')
        if d < 6:
            a(f'''  v_lshrrev_b32 v4, 1, v2
  v_and_b32 v4, 2, v4
  v_xor_b32 v3, v3, v4                   ; cg
  v_lshrrev_b32 v4, 2, v3
  v_lshlrev_b32 v4, 11, v4               ; (cg>>2)*2048
  v_and_b32 v3, 3, v3
  v_lshl_add_u32 v4, v3, 4, v4           ; + (cg&3)*16
  v_add_u32 v4, s24, v4                  ; + nj*64''')
        else:
            a(f'''  v_lshlrev_b32 v4, 4, v3
  v_mov_b32 v6, s25
  v_mov_b32 v5, s26
  v_cmp_gt_u32 vcc, 12, v3
  v_cndmask_b32 v6, v5, v6, vcc
  v_add_u32 v4, v6, v4''')
        a(f'''  v_bfe_u32 v5, v2, 2, 2
  v_lshlrev_b32 v5, 3, v5                ; ((p>>2)&3)*8
  v_lshrrev_b32 v6, 4, v2
  v_lshl_add_u32 v5, v6, 2, v5           ; + (p>>4)*4
  v_and_b32 v6, 3, v2
  v_add_u32 v5, v5, v6                   ; k
  v_mul_u32_u24 v5, {rs}, v5
  v_add_u32 v{V_OFF+j}, v5, v4''')

def xpf_setup(a, mw):
    srd(a, 24, A_PTR, A_PTR + 1, 4 << 20, A_OFF)
    a(f'''  s_lshr_b32 s28, s2, 3
  s_lshl_b32 s28, s28, 6
  s_add_u32 s28, s28, {32*(mw >> 1)}
  v_add_u32 v{V_PF}, s28, v0
  v_lshlrev_b32 v{V_PF}, 11, v{V_PF}
  v_add_u32 v{V_PF}, {128*(mw & 1)}, v{V_PF}
  v_cmp_gt_u32 vcc, 32, v0
  v_mov_b32 v3, 0x7ffffff0
  v_cndmask_b32 v{V_PF}, v3, v{V_PF}, vcc''')
    if O.nopf: a('  s_mov_b32 s26, 0')
def x_pf(a):
    a(f'  buffer_load_dword v{V_PFD}, v{V_PF}, s[24:27], s28 offen')
    a(f'  s_add_u32 s28, s28, 256')

def x_pf_loop(a, mw):
    if O.w2early:
        L = f'L_cpf{mw}'
        a(f"""  s_cmp_eq_u32 s{S_CNT}, 1
  s_cbranch_scc1 {L}
  buffer_load_dword v{V_PFD}, v{V_PF}, s[24:27], s28 offen
  s_add_u32 s28, s28, 256
  s_branch {L}_d
{L}:
  s_mul_i32 s16, s2, 28672
  s_add_u32 s16, s84, s16
  s_addc_u32 s17, s85, 0
  s_mov_b32 s18, 28672
  s_mov_b32 s19, 0x20000
  s_mov_b32 s20, {mw*8192}
  v_lshlrev_b32 v2, 7, v0
  buffer_load_dword v{V_PFD}, v2, s[16:19], s20 offen
{L}_d:""")
        return
    if not O.codepf:
        return x_pf(a)
    L = f'L_cpf{mw}'
    a(f"""  s_cmp_eq_u32 s{S_CNT}, 1
  s_cbranch_scc1 {L}
  buffer_load_dword v{V_PFD}, v{V_PF}, s[24:27], s28 offen
  s_add_u32 s28, s28, 256
  s_branch {L}_d
{L}:
  s_getpc_b64 s[12:13]
{L}_pc:
  s_add_u32 s12, s12, L_xepi-{L}_pc
  s_addc_u32 s13, s13, 0
  v_lshlrev_b32 v2, 7, v0
  v_add_u32 v2, {mw*8192}, v2
  v_min_u32 v2, L_code_end-L_xepi-4, v2
  v_mov_b32 v3, s13
  v_add_co_u32 v2, vcc, s12, v2
  v_addc_co_u32 v3, vcc, 0, v3, vcc
  global_load_dword v{V_PFD}, v[2:3], off
{L}_d:""")

def ypf_setup(a):
    a(f'''  s_lshr_b32 s16, s2, 3
  s_and_b32 s17, s2, 7                   ; xcd
  s_cmp_eq_u32 s{S_MW}, 0
  s_cbranch_scc1 L_pf0
  ; gate / up: lane -> (step = lane/7 (0..3), line = lane%7) ; lanes >= 28 disabled
  s_cmp_eq_u32 s{S_MW}, 1
  s_cselect_b32 s48, s8, s10
  s_cselect_b32 s49, s9, s11
  s_mov_b32 s18, {1024*7168}
  s_cmp_eq_u32 s{S_MW}, 3
  s_cselect_b32 s50, 0, s18
  s_mov_b32 s51, 0x20000
  v_mul_u32_u24 v2, 9363, v0
  v_lshrrev_b32 v2, 16, v2               ; lane/7
  v_mul_u32_u24 v3, 7, v2
  v_sub_u32 v3, v0, v3                   ; lane%7
  v_mul_u32_u24 v2, {32*7168}, v2
  v_lshl_add_u32 v2, v3, 7, v2           ; + line*128
  s_mul_i32 s18, s16, 7168               ; row t
  s_mul_i32 s19, s17, 896
  s_add_u32 s18, s18, s19
  v_add_u32 v{V_PF}, s18, v2
  v_cmp_gt_u32 vcc, 28, v0
  v_mov_b32 v3, 0x7ffffff0
  v_cndmask_b32 v{V_PF}, v3, v{V_PF}, vcc
  s_mov_b32 s53, {4*32*7168}
  s_branch L_pfd
L_pf0:
  ; wqkv: lane -> (step = lane/6, seg = (lane%6)>>1, line = lane&1) ; lanes >= 24 disabled
  s_mov_b32 s48, s4
  s_mov_b32 s49, s5
  s_mov_b32 s50, {1024*6144}
  s_mov_b32 s51, 0x20000
  v_mul_u32_u24 v2, 10923, v0
  v_lshrrev_b32 v2, 16, v2               ; lane/6
  v_mul_u32_u24 v3, 6, v2
  v_sub_u32 v3, v0, v3                   ; lane%6
  v_mul_u32_u24 v2, {32*6144}, v2
  v_lshrrev_b32 v4, 1, v3
  v_lshl_add_u32 v2, v4, 11, v2          ; + seg*2048
  v_and_b32 v3, 1, v3
  v_lshl_add_u32 v2, v3, 7, v2           ; + line*128
  s_mul_i32 s18, s16, 6144
  s_lshl_b32 s19, s17, 8                 ; xcd*256
  s_add_u32 s18, s18, s19
  v_add_u32 v{V_PF}, s18, v2
  v_cmp_gt_u32 vcc, 24, v0
  v_mov_b32 v3, 0x7ffffff0
  v_cndmask_b32 v{V_PF}, v3, v{V_PF}, vcc
  s_mov_b32 s53, {4*32*6144}
L_pfd:
  s_mov_b32 s52, 0''')
    if O.w2early:
        a(f'''  s_cmp_eq_u32 s{S_MW}, 3
  s_cbranch_scc0 L_pf3
  s_lshl_b32 s18, s2, 13
  s_add_u32 s48, s86, s18
  s_addc_u32 s49, s87, 0
  s_mov_b32 s50, 8192
  v_lshlrev_b32 v{V_PF}, 7, v0
  s_mov_b32 s53, 8192
  s_mov_b32 s52, {(-(7 if O.spread >= 2 else 8) * 8192) & 0xffffffff}
L_pf3:''')
    if O.nopf: a('  s_mov_b32 s50, 0')
def y_pf(a):
    a(f'  buffer_load_dword v{V_PFD}, v{V_PF}, s[48:51], s52 offen')
    a(f'  s_add_u32 s52, s52, s53')

def y_pf_at(a, kk):
    a(f'  s_cmp_eq_u32 s{S_MW}, {kk}')
    a(f'  s_cbranch_scc0 L_Ypf{kk}')
    y_pf(a)
    a(f'L_Ypf{kk}:')

def w2_pf(a, isx):
    if O.now2pf or O.w2early: return
    n, lo = (28672, 26) if isx else (8192, 24)
    a(f'''  s_mul_i32 s16, s2, {n}
  s_add_u32 s16, s{lo}, s16
  s_addc_u32 s17, s{lo+1}, 0
  s_mov_b32 s18, {n}
  s_mov_b32 s19, 0x20000
  s_lshl_b32 s20, s{S_MW}, 13
  v_lshlrev_b32 v1, 7, v0
  buffer_load_dword v{V_PFT}, v1, s[16:19], s20 offen''')

def stats_loads(a):
    a(f"""  s_mov_b32 s28, s36
  s_mov_b32 s29, s37
  s_mov_b32 s30, {2048*2048}
  s_mov_b32 s31, 0x20000
  s_lshl_b32 s14, s2, 3
  s_add_u32 s14, s14, s{S_W}
  s_lshl_b32 s14, s14, 11
  v_lshlrev_b32 v2, 5, v0
  v_add_u32 v2, s14, v2
  buffer_load_dwordx4 v[96:99], v2, s[28:31], 0 offen
  buffer_load_dwordx4 v[100:103], v2, s[28:31], 0 offen offset:16""")

def wave_sum(a, v, t):
    for r in (8, 4, 2, 1):
        a(f'  v_add_f32_dpp v{v}, v{v}, v{v} row_ror:{r} row_mask:0xf bank_mask:0xf')
    allreduce16(a, v, t, 'v_add_f32')

def stats_compute(a, nyounger):
    k0 = len(a.l)
    stats_compute_(a, nyounger)
    if O.sched >= 3: a.l[k0:] = sched.sched(a.l[k0:])

def stats_compute_(a, nyounger):
    a(f'  s_waitcnt vmcnt({nyounger})')
    for i in range(8):
        a(f'  v_lshlrev_b32 v{104+2*i}, 16, v{96+i}')
        a(f'  v_and_b32 v{105+2*i}, 0xffff0000, v{96+i}')
    for q in range(4):
        a(f'  v_add_f32 v{120+q}, v{104+q}, v{108+q}')
        a(f'  v_add_f32 v{124+q}, v{112+q}, v{116+q}')
    for q in range(4): a(f'  v_add_f32 v{120+q}, v{120+q}, v{124+q}')
    a('  v_add_f32 v120, v120, v121')
    a('  v_add_f32 v122, v122, v123')
    a('  v_add_f32 v120, v120, v122')
    wave_sum(a, 120, 121)
    a('  v_mul_f32 v120, 0x3a800000, v120       ; mean')
    for i in range(16): a(f'  v_sub_f32 v{104+i}, v{104+i}, v120')
    for q in range(4): a(f'  v_mul_f32 v{124+q}, v{104+q}, v{104+q}')
    for i in range(4, 16): a(f'  v_fmac_f32 v{124 + i % 4}, v{104+i}, v{104+i}')
    a('  v_add_f32 v124, v124, v125')
    a('  v_add_f32 v126, v126, v127')
    a('  v_add_f32 v124, v124, v126')
    wave_sum(a, 124, 125)
    a("""  v_mov_b32 v122, 0x3727c5ac             ; 1e-5
  v_fmac_f32 v122, 0x3a800000, v124
  v_rsq_f32 v121, v122
  v_mov_b32 v123, 0""")
    srd(a, 16, 6, 7, 32768, WS_STATS)
    a(f"""  s_lshl_b32 s14, s2, 3
  s_add_u32 s14, s14, s{S_W}
  s_lshl_b32 s14, s14, 4
  v_mov_b32 v2, s14
  v_cmp_eq_u32 vcc, 0, v0
  s_and_saveexec_b64 s[20:21], vcc
  buffer_store_dwordx4 v[120:123], v2, s[16:19], 0 offen sc1
  s_mov_b64 exec, s[20:21]""")

def stats_gather(a):
    srd(a, 16, 6, 7, 32768, WS_STATS)
    a(f"""  s_lshl_b32 s12, s{S_MI}, 8
  v_add_u32 v2, s12, v0
  v_lshlrev_b32 v2, 4, v2                ; token*16
  s_mov_b32 m0, {STATS_L + 256}
  s_sub_u32 s12, s12, 16""")
    for j in range(4):
        a(f'  buffer_load_dwordx4 v2, s[16:19], 0 offen offset:{j*1024} sc1 lds')
    a(f"""  v_add_u32 v2, s12, v0
  v_max_i32 v2, 0, v2
  v_lshlrev_b32 v2, 4, v2
  s_mov_b32 m0, {STATS_L}
  s_mov_b64 exec, 0xffff
  buffer_load_dwordx4 v2, s[16:19], 0 offen sc1 lds
  s_mov_b64 exec, -1""")

def cs_idx(a, mw, d):
    if mw == 2:
        a(f'  s_mov_b32 s{d}, s{S_MI}')
    else:
        a(f'  s_add_u32 s{d}, s{S_MI}, 8')
        a(f'  s_min_u32 s{d}, s{d}, 13')

def cs_ldsoff(a, i):
    a(f"""  s_lshr_b32 s13, s{i}, 1
  s_and_b32 s14, s{i}, 1
  s_sub_u32 s15, s{i}, 2
  s_sub_u32 s16, s{i}, 7
  s_cmp_lt_u32 s{i}, 9
  s_cselect_b32 s15, s15, s16
  s_cselect_b32 s16, 0, 1
  s_cmp_lt_u32 s{i}, 4
  s_cselect_b32 s13, s13, s16
  s_cselect_b32 s14, s14, s15
  s_mul_i32 s13, s13, 7168
  s_lshl_b32 s14, s14, 5
  s_add_u32 s{S_DYN}, s13, s14""")

def csg_slot(a, mw):
    cs_idx(a, mw, 12)
    a(f"""  s_lshl_b32 s13, s{S_NJ}, 4
  s_add_u32 s13, s13, s12
  s_lshl_b32 s13, s13, 6
  s_add_u32 s13, s13, {WS_CSG}
  s_add_u32 s16, s6, s13
  s_addc_u32 s17, s7, 0
  s_mov_b32 s18, 64
  s_mov_b32 s19, 0x20000""")

def csg_clear(a, mw, lbl):
    a(f'  s_cmp_eq_u32 s{S_CNT}, 6')
    a(f'  s_cbranch_scc0 {lbl}')
    if mw == 3:
        a(f'  s_cmp_ge_u32 s{S_MI}, 6')
        a(f'  s_cbranch_scc1 {lbl}')
    csg_slot(a, mw)
    a(f"""  v_lshlrev_b32 v1, 2, v0
  v_mov_b32 v2, -1
  buffer_store_dword v2, v1, s[16:19], 0 offen sc1""")
    a.label(lbl)

def cs_publish(a, mw, lbl):
    if mw == 3:
        a(f'  s_cmp_ge_u32 s{S_MI}, 6')
        a(f'  s_cbranch_scc1 {lbl}')
    csg_slot(a, mw)
    a(f"""  v_lshrrev_b32 v4, 4, v0
  v_lshlrev_b32 v4, 4, v4                ; g*16
  s_mov_b32 s12, 0x00010001
  s_mov_b32 s13, 0x00010001
  s_mov_b64 exec, s[12:13]
  buffer_store_dwordx4 {vr(V_CS,4)}, v4, s[16:19], 0 offen{'' if O.csplain else ' sc1'}
  s_mov_b64 exec, -1""")
    a.label(lbl)

def cs_setup(a, first, n):
    a(f"""  s_lshl_b32 s20, s{S_NJ}, 10
  s_add_u32 s20, s20, {WS_CSG + first*64}
  s_add_u32 s20, s6, s20
  s_addc_u32 s21, s7, 0
  s_mov_b32 s22, {n*64}
  s_mov_b32 s23, 0x20000
  v_lshrrev_b32 v2, 4, v0
  v_lshlrev_b32 v2, 4, v2""")

def cs_load(a, b, dst):
    a(f'  buffer_load_dwordx4 {vr(dst+4*b,4)}, v2, s[20:23], 0 offen offset:{b*64} sc1')

def cs_check(a, n, dst, lbl):
    a(f'  s_mov_b32 s29, 0x40000')
    a.label(lbl)
    a('  s_waitcnt vmcnt(0)')
    a(f'  v_max3_u32 v3, v{dst}, v{dst+1}, v{dst+2}')
    r = dst + 3
    while r + 1 < dst + 4 * n:
        a(f'  v_max3_u32 v3, v3, v{r}, v{r+1}'); r += 2
    if r < dst + 4 * n: a(f'  v_max_u32 v3, v3, v{r}')
    a(f"""  v_cmp_eq_u32 vcc, -1, v3
  s_cmp_eq_u64 vcc, 0
  s_cbranch_scc1 {lbl}_ok
  s_sub_u32 s29, s29, 1
  s_cmp_eq_u32 s29, 0
  s_cbranch_scc1 {lbl}_ok""")
    for b in range(n): cs_load(a, b, dst)
    a(f'  s_branch {lbl}')
    a.label(f'{lbl}_ok')

def cs_gather(a, first, n, dst, lbl):
    cs_setup(a, first, n)
    for b in range(n): cs_load(a, b, dst)
    cs_check(a, n, dst, lbl)

def zero_acc(a, lo):
    for r in range(lo, 256):
        a(f'  v_mov_b32 v{r}, 0')

def gen_x(a, mw):
    L = f'X{mw}'
    ms = x_mfmas(mw)
    a.label(f'L_{L}')
    x_setup(a, mw)
    if mw >= 2: cs_idx(a, mw, 12); cs_ldsoff(a, 12)
    stamp(a, 1)
    for st in range(3): x_dma(a, st)
    if mw == 0: init_clear(a)
    xpf_setup(a, mw)
    a(f'  s_mov_b32 s28, 256')
    x_pf(a)
    if O.thinclr: px_clear_setup(a)
    stats_compute(a, 16)
    zero_acc(a, V_CS)
    a('  s_waitcnt vmcnt(12)')
    a('  s_barrier')
    stamp(a, 2)
    loadphase(a, lambda t: x_reads(t, 0, mw), [lambda t: x_dma(t, 3)])
    a('  s_waitcnt lgkmcnt(0)')
    a('  s_barrier')
    pk = mw if O.spread else 0
    xw = [10 if q == pk else 11 for q in range(4)]
    def full(kk):
        compute_bar(a, ms, xw[kk])
        vm = [lambda t: x_dma(t, kk)] if not O.x_noW else []
        if kk == pk: vm.append(lambda t: x_pf_loop(t, mw))
        loadphase(a, lambda t: x_reads(t, (kk + 1) % 4, mw), vm)
        if kk == 1 and mw >= 2: csg_clear(a, mw, f'L_{L}_nocs')
        if O.thinclr: px_clear1(a, f'L_{L}_noclr{kk}', kk)
        elif kk >= 2 and not O.x_noclr: px_clear(a, f'L_{L}_noclr{kk}', 4 * (kk - 2))
        if kk == 1 and mw == 0:
            a(f'  s_cmp_eq_u32 s{S_CNT}, {3 if O.thinclr else 4}')
            a(f'  s_cbranch_scc0 L_{L}_noinit')
            init_count(a)
            a.label(f'L_{L}_noinit')
        a('  s_waitcnt lgkmcnt(0)')
        a('  s_barrier')
    a(f'  s_mov_b32 s{S_CNT}, 7')
    (a(f'  .p2align {O.alignl}') if O.alignl else None); a.label(f'L_{L}_loop')
    for kk in range(4): full(kk)
    a(f'  s_sub_u32 s{S_CNT}, s{S_CNT}, 1')
    a(f'  s_cmp_lg_u32 s{S_CNT}, 0')
    a(f'  s_cbranch_scc1 L_{L}_loop')
    a('  s_load_dwordx2 s[24:25], s[0:1], 16      ; wo')
    a('  s_load_dwordx2 s[26:27], s[0:1], 48      ; wd')
    if mw == 0: a('  s_load_dwordx2 s[28:29], s[0:1], 64      ; debug')
    for kk, wv in zip(range(4), (10, 5, 8 if O.xearly else 0, None)):
        compute(a, [m for m in ms if not (kk == 3 and mw >= 2 and m[0] == V_CS)], wv)
        a('  s_barrier')
        if kk < 3:
            x_reads(a, (kk + 1) % 4, mw)
            if kk == 0 and mw == 0: init_check_issue(a)
            if O.xearly and kk == 0:
                a('  s_waitcnt lgkmcnt(0)')
                g2_bstate(a)
            if O.xearly and kk == 1:
                g2_dmaB(a, 0); g2_dmaB(a, 1)
            if kk == 2 and mw >= 2:
                a('  s_waitcnt lgkmcnt(0)')
                mfma(a, V_CS, V_CS + 4, V_XH)
                cs_publish(a, mw, f'L_{L}_nopub')
            if kk == 2:
                if mw == 0:
                    init_check(a)
                    flag_srd(a, 16)
                    a(f'''  s_xor_b32 s12, s2, 8
  s_lshl_b32 s12, s12, 2
  s_add_u32 s12, s12, {XCC_OFF}
  v_mov_b32 v2, s12
  buffer_load_dword v5, v2, s[16:19], 0 offen sc1''')
                    stats_gather(a)
                w2_pf(a, True)
                if not O.xearly:
                    g2_bstate(a)
                    g2_dmaB(a, 0); g2_dmaB(a, 1)
            a('  s_waitcnt lgkmcnt(0)')
            a('  s_barrier')
    a(f'  s_mov_b32 s39, {mw}')
    a('  s_branch L_xepi')

def gen_y(a):
    L = 'Y'
    ms = y_mfmas()
    a.label(f'L_{L}')
    stamp(a, 1)
    y_dma(a, 0)
    y_pf(a)
    y_pf(a)
    a(f'''  s_cmp_eq_u32 s{S_MW}, 0
  s_cbranch_scc0 L_Y_noones
  v_lshlrev_b32 v2, 2, v0
  v_mov_b32 v3, 0x3f803f80
  ds_write_b32 v2, v3 offset:32768
  v_add_u32 v2, {ASLOT}, v2
  ds_write_b32 v2, v3 offset:32768
  v_mov_b32 v2, {CNT_L}
  v_mov_b32 v3, 0
  ds_write_b32 v2, v3
L_Y_noones:''')
    stats_compute(a, 11)
    zero_acc(a, V_ACC)
    a('  s_waitcnt vmcnt(3) lgkmcnt(0)')
    a('  s_barrier')
    stamp(a, 2)
    a('  s_barrier')
    def full(kk, tail=False):
        vm = []
        if kk == 0 and not O.x_noA: vm.append(lambda t: y_dma(t, 1))
        if kk == 2 and not tail and not O.x_noA: vm.append(lambda t: y_dma(t, 0))
        if O.spread < 2:
            if kk == 0 and not tail: vm.append(y_pf)
        elif not tail:
            vm.append(lambda t: y_pf_at(t, kk))
        loadphase(a, lambda t: y_reads(t, kk), vm)
        a('  s_waitcnt lgkmcnt(0)')
        if O.spread < 2 or tail:
            if kk == 1: a(f'  s_waitcnt vmcnt({0 if tail else 1})')
            if kk == 3 and not tail: a('  s_waitcnt vmcnt(0)')
        elif kk in (1, 3):
            a(f'''  s_cmp_{'lt' if kk == 1 else 'ge'}_u32 s{S_MW}, 2
  s_cbranch_scc1 L_Yw{kk}a
  s_waitcnt vmcnt(0)
  s_branch L_Yw{kk}b
L_Yw{kk}a:
  s_waitcnt vmcnt(1)
L_Yw{kk}b:''')
        a('  s_barrier')
        if tail and kk == 3:
            if O.ydma:
                g2_bstate(a)
                g2_dmaB(a, 0); g2_dmaB(a, 1)
            cs_setup(a, 4, 10)
            for i, (d, x, y) in enumerate(ms):
                mfma(a, d, x, y)
                if i % 4 == 3: cs_load(a, i // 4, V_W)
            a('  s_barrier')
        elif tail:
            compute(a, ms, None)
            a('  s_barrier')
        else:
            compute_bar(a, ms, None)
    a(f'  s_mov_b32 s{S_CNT}, 7')
    (a(f'  .p2align {O.alignl}') if O.alignl else None); a.label(f'L_{L}_loop')
    for kk in range(4): full(kk)
    a(f'  s_sub_u32 s{S_CNT}, s{S_CNT}, 1')
    a(f'  s_cmp_lg_u32 s{S_CNT}, 0')
    a(f'  s_cbranch_scc1 L_{L}_loop')
    a('  s_load_dwordx2 s[24:25], s[0:1], 16      ; wo')
    a('  s_load_dwordx2 s[26:27], s[0:1], 48      ; wd')
    for kk in range(4): full(kk, True)
    a('  s_branch L_yepi')

def cs_write(a, items):
    a(f'''  v_lshrrev_b32 v2, 4, v0
  v_lshlrev_b32 v2, 4, v2
  v_add_u32 v2, {CS_L}, v2               ; + g*16
  s_mov_b32 s12, 0x00010001
  s_mov_b32 s13, 0x00010001
  s_mov_b64 exec, s[12:13]''')
    for r, blk in items:
        a(f'  ds_write_b128 v2, {vr(r,4)} offset:{blk*64}')
    a('  s_mov_b64 exec, -1')

GA = -2.0 * 0.7978845608028654 * 1.4426950408889634
GB = GA * 0.044715
def fbits(x): return '0x%08x' % struct.unpack('<I', struct.pack('<f', x))[0]

def stats_consts(a, st):
    a(f'  v_mul_f32 v{st+3}, v{st+1}, v{st+1}')
    a(f'  v_mul_f32 v{st+1}, {fbits(GA)}, v{st+1}')
    a(f'  v_mul_f32 v{st+3}, v{st+3}, v{st+1}')
    a(f'  v_mul_f32 v{st+3}, {fbits(0.044715)}, v{st+3}')

LO = 'op_sel:[0,{},0] op_sel_hi:[1,{},1]'
def center(a, r, cs, st):
    for h in (0, 2):
        a(f'  v_pk_fma_f32 {vr(r+h,2)}, {vr(cs+h,2)}, {vr(st,2)}, {vr(r+h,2)} op_sel_hi:[1,0,1] neg_lo:[0,1,0] neg_hi:[0,1,0]')
def scale(a, r, st):
    for h in (0, 2):
        a(f'  v_pk_mul_f32 {vr(r+h,2)}, {vr(r+h,2)}, {vr(st,2)} op_sel:[0,1] op_sel_hi:[1,1]')

def geglu(a, g, u, dst, tmp, st):
    t0, t1, t2, t3 = tmp, tmp + 2, tmp + 4, tmp + 6
    P = lambda r: vr(r, 2)
    a(f'  v_pk_mul_f32 {P(t0)}, {P(g)}, {P(g)}')
    a(f'  v_pk_mul_f32 {P(t1)}, {P(g+2)}, {P(g+2)}')
    a(f'  v_pk_fma_f32 {P(t0)}, {P(t0)}, {P(st+2)}, {P(st)} op_sel:[0,1,1] op_sel_hi:[1,1,1]')
    a(f'  v_pk_fma_f32 {P(t1)}, {P(t1)}, {P(st+2)}, {P(st)} op_sel:[0,1,1] op_sel_hi:[1,1,1]')
    a(f'  v_pk_mul_f32 {P(t0)}, {P(t0)}, {P(g)}')
    a(f'  v_pk_mul_f32 {P(t1)}, {P(t1)}, {P(g+2)}')
    a(f'  v_pk_mul_f32 {P(t2)}, {P(g)}, {P(u)}')
    a(f'  v_exp_f32 v{t0}, v{t0}')
    a(f'  v_exp_f32 v{t0+1}, v{t0+1}')
    a(f'  v_exp_f32 v{t1}, v{t1}')
    a(f'  v_exp_f32 v{t1+1}, v{t1+1}')
    a(f'  v_pk_mul_f32 {P(t3)}, {P(g+2)}, {P(u+2)}')
    a(f'  v_pk_fma_f32 {P(t0)}, {P(t0)}, {P(st+2)}, {P(st+2)} op_sel_hi:[1,0,0]')
    a(f'  v_pk_fma_f32 {P(t1)}, {P(t1)}, {P(st+2)}, {P(st+2)} op_sel_hi:[1,0,0]')
    a(f'  v_rcp_f32 v{t0}, v{t0}')
    a(f'  v_rcp_f32 v{t0+1}, v{t0+1}')
    a(f'  v_rcp_f32 v{t1}, v{t1}')
    a(f'  v_rcp_f32 v{t1+1}, v{t1+1}')
    a(f'  s_nop 0')
    a(f'  v_pk_mul_f32 {P(t2)}, {P(t2)}, {P(t0)}')
    a(f'  v_pk_mul_f32 {P(t3)}, {P(t3)}, {P(t1)}')
    a(f'  v_cvt_pk_bf16_f32 v{dst}, v{t2}, v{t2+1}')
    a(f'  v_cvt_pk_bf16_f32 v{dst+1}, v{t3}, v{t3+1}')

def hf_srd(a):
    srd(a, 16, 6, 7, HF_BYTES, WS_HF)
    a(f'''  s_lshl_b32 s12, s{S_MI}, 2
  s_add_u32 s12, s12, s{S_MW}
  s_mul_i32 s12, s12, {144*4096}
  v_lshlrev_b32 v1, 4, v0
  v_add_u32 v1, s12, v1
  s_lshr_b32 s12, s{S_NJ}, 4
  s_mul_i32 s12, s12, 72                 ; base
  s_and_b32 s13, s{S_NJ}, 15             ; n16
  s_add_u32 s14, s12, s13
  s_lshl_b32 s36, s14, 12                ; o
  s_add_u32 s14, s14, 16
  s_lshl_b32 s34, s14, 12
  s_lshl_b32 s14, s13, 1
  s_add_u32 s14, s14, s12
  s_add_u32 s14, s14, 32
  s_lshl_b32 s37, s14, 12
  s_lshr_b32 s14, s13, 1
  s_add_u32 s14, s14, s12
  s_add_u32 s14, s14, 64
  s_lshl_b32 s35, s14, 12
  s_and_b32 s13, s13, 1
  s_lshl_b32 s13, s13, 10
  s_add_u32 s35, s35, s13''')

def o_signal(a):
    a(f"""  s_waitcnt vmcnt(2)
  v_mov_b32 v2, {CNT_L}
  v_mov_b32 v3, 1
  s_mov_b64 exec, 1
  ds_add_rtn_u32 v3, v2, v3
  s_waitcnt lgkmcnt(0)
  v_readfirstlane_b32 s12, v3
  s_mov_b64 exec, -1
  s_cmp_eq_u32 s12, 3
  s_cbranch_scc0 L_osig_done
  s_lshl_b32 s12, s{S_MI}, 7
  s_lshl_b32 s13, s{S_NJ}, 2
  s_add_u32 s12, s12, s13
  s_add_u32 s12, s12, {FLAG_G1 + 1024}""")
    flag_srd(a, 20)
    a(f"""  v_mov_b32 v2, s12
  v_mov_b32 v3, 1
  s_mov_b64 exec, 1
  buffer_store_dword v3, v2, s[20:23], 0 offen sc1
  s_mov_b64 exec, -1
L_osig_done:""")

def gen_xepi(a):
    a0 = a; a = Asm()
    gen_xepi_(a)
    for l in (sched.sched(a.l) if O.sched else a.l): a0(l)

def gen_xepi_(a):
    a.label('L_xepi')
    stamp(a, 3)
    QP, KP, VP0, VP1 = 8, 24, 44, 54
    a('  s_nop 7')
    def pack(dst, src):
        a(f'  v_cvt_pk_bf16_f32 v{dst}, v{src}, v{src+1}')
        a(f'  v_cvt_pk_bf16_f32 v{dst+1}, v{src+2}, v{src+3}')
    a(f'''  s_mul_i32 s12, s{S_MW}, 5120
  s_add_u32 s12, s12, {EX}
  v_lshlrev_b32 v2, 4, v0
  v_add_u32 v3, s12, v2
  ds_write_b128 v3, {vr(acc(2,3),4)}
  ds_write_b128 v3, {vr(acc(3,3),4)} offset:1024
  ds_write_b128 v3, {vr(acc(4,3),4)} offset:2048
  ds_write_b128 v3, {vr(acc(5,3),4)} offset:3072
  ds_write_b128 v3, {vr(V_ACCH,4)} offset:4096
  s_sub_u32 s13, s12, 5120
  s_add_u32 s14, s13, 1024
  s_add_u32 s15, s13, 2048
  s_add_u32 s22, s13, 3072
  s_mov_b32 s20, {EX+4096}
  s_mov_b32 s21, {EX+4096+5120}
  s_mov_b32 s23, {EX+4096+2*5120}
  s_mov_b32 s29, {EX+4096+3*5120}
  s_cmp_eq_u32 s{S_MW}, 0
  s_cselect_b32 s20, s20, s13
  s_cselect_b32 s21, s21, s14
  s_cselect_b32 s15, s23, s15
  s_cselect_b32 s22, s29, s22
  v_add_u32 v80, s20, v2
  v_add_u32 v81, s21, v2
  v_add_u32 v82, s15, v2
  v_add_u32 v83, s22, v2''')
    for mw in range(4):
        a(f'  s_cmp_eq_u32 s39, {mw}')
        a(f'  s_cbranch_scc0 L_xcs{mw}')
        if mw < 2:
            cs_write(a, [(V_CS, mw), (V_ACCH, 2 + mw)])
        else:
            a(f'''  v_lshlrev_b32 v4, 2, v0
  v_add_u32 v4, {CS_L + (2 + mw) * 64}, v4
  s_mov_b64 exec, 0xffff
  ds_write_b32 v4, v{V_ACCH}
  s_mov_b64 exec, -1''')
        if mw == 0:
            a(f'  s_waitcnt vmcnt({0 if O.xearly else (8 if (O.now2pf or O.w2early) else 9)})')
            a(f'''  v_readfirstlane_b32 s12, v5
  s_getreg_b32 s13, hwreg(HW_REG_XCC_ID)
  s_and_b32 s13, s13, 15
  s_cmp_eq_u32 s12, s13
  s_cselect_b32 s12, 1, 0
  v_mov_b32 v4, {XF_L}
  v_mov_b32 v5, s12
  ds_write_b32 v4, v5''')
        a.label(f'L_xcs{mw}')
    hf_srd(a)
    a('''  v_and_b32 v66, 15, v0                  ; c
  v_lshrrev_b32 v67, 4, v0
  v_lshlrev_b32 v67, 2, v67              ; 4g
''')
    a(f'''  s_lshl_b32 s12, s{S_MW}, 10
  s_add_u32 s12, s12, {STATS_L}
  v_lshl_add_u32 v4, v66, 4, s12
  v_lshl_add_u32 v6, v67, 4, s12
  v_lshlrev_b32 v92, 2, v67
  v_add_u32 v92, {CS_L}, v92
  v_lshlrev_b32 v93, 2, v66
  v_add_u32 v93, {CS_L}, v93
  v_sub_u32 v66, v66, v67                ; c - 4g''')
    for j in range(4):
        a(f'''  v_subrev_u32 v68, {j}, v66             ; delta
  v_and_b32 v69, 0xfffffff1, v68
  v_cmp_eq_u32 s[{44+2*j}:{45+2*j}], 0, v69
  v_add_u32 v68, 16, v68
  v_and_b32 v69, 0xfffffff1, v68
  v_cmp_eq_u32 s[{52+2*j}:{53+2*j}], 0, v69''')
    a(f'''  s_or_b32 s12, s{S_MI}, s{S_MW}
  s_cmp_eq_u32 s12, 0
  s_cselect_b64 s[60:61], 0, -1''')
    a('  s_waitcnt lgkmcnt(0)')
    a('  s_barrier')
    a(f'''  ds_read_b128 v[64:67], v80
  ds_read_b128 v[68:71], v81
  ds_read_b128 v[72:75], v82
  ds_read_b128 v[76:79], v83
  ds_read_b128 v[84:87], v92 offset:{2*64}
  ds_read_b128 v[88:91], v92 offset:{3*64}
  ds_read_b32 v2, v93 offset:{4*64}
  ds_read_b32 v3, v93 offset:{5*64}
  ds_read_b128 v[80:83], v4''')
    def statsN(dst, t):
        for j in range(4):
            a(f'  ds_read_b64 {vr(dst+2*j,2)}, v6 offset:{(t+1)*256 + j*16}')
    def corrV(r, cs, sn):
        for j in range(4):
            a(f'  v_fma_f32 v{r+j}, -v{sn+2*j}, v{cs}, v{r+j}')
        for j in range(4):
            a(f'  v_mul_f32 v{r+j}, v{r+j}, v{sn+2*j+1}')
    statsN(8, -1)
    statsN(16, 0)
    a('  s_waitcnt lgkmcnt(8)')
    for r, cs in ((64, 84), (68, 88)):
        center(a, r, cs, 80); scale(a, r, 80)
    pack(KP, 64); pack(KP + 2, 68)
    a('  s_waitcnt lgkmcnt(4)')
    corrV(72, 2, 8); corrV(76, 3, 8)
    pack(VP0, 72); pack(VP1, 76)
    for t in range(4):
        a(f'  ds_read_b128 {vr(64+4*t,4)}, v4 offset:{(t+1)*256}')
    statsN(8, 1)
    a('  s_waitcnt lgkmcnt(8)')
    corrV(acc(4, 0), 2, 16); corrV(acc(5, 0), 3, 16)
    statsN(16, 2)
    pack(VP0 + 2, acc(4, 0)); pack(VP1 + 2, acc(5, 0))
    a('  s_waitcnt lgkmcnt(4)')
    corrV(acc(4, 1), 2, 8); corrV(acc(5, 1), 3, 8)
    statsN(8, 3)
    pack(VP0 + 4, acc(4, 1)); pack(VP1 + 4, acc(5, 1))
    for t in range(4):
        for blk, cs in ((2, 84), (3, 88)):
            center(a, acc(blk, t), cs, 64 + 4 * t); scale(a, acc(blk, t), 64 + 4 * t)
        pack(KP + 4 + 4 * t, acc(2, t)); pack(KP + 6 + 4 * t, acc(3, t))
    a(f'  ds_read_b128 v[84:87], v92 offset:{0*64}')
    a(f'  ds_read_b128 v[88:91], v92 offset:{1*64}')
    a('  s_waitcnt lgkmcnt(6)')
    corrV(acc(4, 2), 2, 16); corrV(acc(5, 2), 3, 16)
    pack(VP0 + 6, acc(4, 2)); pack(VP1 + 6, acc(5, 2))
    a('  s_waitcnt lgkmcnt(2)')
    corrV(acc(4, 3), 2, 8); corrV(acc(5, 3), 3, 8)
    pack(VP0 + 8, acc(4, 3)); pack(VP1 + 8, acc(5, 3))
    a('  s_waitcnt lgkmcnt(0)')
    for t in range(4):
        for blk, cs in ((0, 84), (1, 88)):
            center(a, acc(blk, t), cs, 64 + 4 * t)
        pack(QP + 4 * t, acc(0, t)); pack(QP + 4 * t + 2, acc(1, t))
    SC = (32 ** -0.5) * 1.4426950408889634
    for t in range(4):
        a(f'  v_mul_f32 v{84+t}, {fbits(SC)}, v{65+4*t}')
    cs_gather(a, 0, 4, acc(4, 0), 'L_xcsg')
    a(f'  v_mov_b32 v88, 0xf149f2ca              ; -1e30')
    S = 68
    for t in (1, 2, 3, 0):
        mfma(a, S, KP + 4 * t, QP + 4 * t, '0')
        mfma(a, S + 4, KP + 4 + 4 * t, QP + 4 * t, '0')
        for j in range(4):
            m = f's[{52+2*j}:{53+2*j}]'
            if t == 0:
                a(f'  s_and_b64 s[62:63], {m}, s[60:61]')
                m = 's[62:63]'
            a(f'  v_cndmask_b32 v{S+j}, v88, v{S+j}, {m}')
        for j in range(4):
            a(f'  v_cndmask_b32 v{S+4+j}, v88, v{S+4+j}, s[{44+2*j}:{45+2*j}]')
        a(f'  v_max3_f32 v76, v{S}, v{S+1}, v{S+2}')
        a(f'  v_max3_f32 v76, v76, v{S+3}, v{S+4}')
        a(f'  v_max3_f32 v76, v76, v{S+5}, v{S+6}')
        a(f'  v_max_f32 v76, v76, v{S+7}')
        allreduce16(a, 76, 77, 'v_max_f32')
        a(f'  v_mul_f32 v76, v{84+t}, v76')
        for j in range(8):
            a(f'  v_fma_f32 v{S+j}, v{S+j}, v{84+t}, -v76')
        for j in range(8):
            a(f'  v_exp_f32 v{S+j}, v{S+j}')
        a(f'  v_add_f32 v76, v{S}, v{S+1}')
        a(f'  v_add_f32 v77, v{S+2}, v{S+3}')
        a(f'  v_add_f32 v78, v{S+4}, v{S+5}')
        a(f'  v_add_f32 v79, v{S+6}, v{S+7}')
        for j in range(4):
            a(f'  v_cvt_pk_bf16_f32 v{80+j}, v{S+2*j}, v{S+2*j+1}')
        a(f'  v_add_f32 v76, v76, v77')
        a(f'  v_add_f32 v78, v78, v79')
        a(f'  v_add_f32 v76, v76, v78')
        Oa = acc(0, t); O1 = acc(1, t)
        mfma(a, Oa, VP0 + 2 * t, 80, '0')
        mfma(a, O1, VP1 + 2 * t, 80, '0')
        allreduce16(a, 76, 77, 'v_add_f32')
        a(f'  v_rcp_f32 v76, v76')
        for j in range(4):
            a(f'  v_mul_f32 v{Oa+j}, v{Oa+j}, v76')
        for j in range(4):
            a(f'  v_mul_f32 v{O1+j}, v{O1+j}, v76')
        R = acc(2, t)
        pack(R, Oa); pack(R + 2, O1)
        a(f'  buffer_store_dwordx4 {vr(R,4)}, v1, s[16:19], s36 offen offset:{t*1024}{HFF()}')
    for t in range(4):
        a(f'  ds_read_b128 {vr(24+4*t,4)}, v4 offset:{(t+1)*256}')
    a('  s_waitcnt lgkmcnt(0)')
    for t in range(4): stats_consts(a, 24 + 4 * t)
    for t in range(4):
        st = 24 + 4 * t
        for i, b in enumerate((6, 7, 8, 9)): center(a, acc(b, t), acc(4, 0) + 4 * i, st)
        R = acc(6, t)
        geglu(a, acc(6, t), acc(8, t), R, 40 + 16 * (t & 1), st)
        geglu(a, acc(7, t), acc(9, t), R + 2, 48 + 16 * (t & 1), st)
        a(f'  buffer_store_dwordx4 {vr(R,4)}, v1, s[16:19], s34 offen offset:{t*1024}{HFF()}')
        if t == 1: o_signal(a)
    a('  s_branch L_g2_entry')

def gen_yepi(a):
    a0 = a; a = Asm()
    gen_yepi_(a)
    for l in (sched.sched(a.l) if O.sched else a.l): a0(l)

def gstore(a, line, n=[0]):
    if O.dry:
        n[0] += 1
        a(f'  s_cbranch_execz L_gs{n[0]}')
        a(line)
        a(f'L_gs{n[0]}:')
    else:
        a(line)

def dry_exit(a, lbl):
    if O.dry:
        a(f'  s_cbranch_execz L_dry_ret')
        a(f'{lbl}:')

def gen_yepi_(a):
    a.label('L_yepi')
    stamp(a, 3)
    ST, CS = 8, V_W
    a(f'''  v_and_b32 v66, 15, v0                  ; c'''.replace('v66', 'v24'))
    a(f'''  s_lshl_b32 s12, s{S_MW}, 10
  s_add_u32 s12, s12, {STATS_L + 256}
  v_lshl_add_u32 v4, v24, 4, s12''')
    for t in range(4):
        a(f'  ds_read_b128 {vr(ST+4*t,4)}, v4 offset:{t*256}')
    cs_check(a, 10, CS, 'L_ycsg')
    w2_pf(a, False)
    if not O.ydma:
        g2_bstate(a)
        g2_dmaB(a, 0); g2_dmaB(a, 1)
    hf_srd(a)
    a('  s_mov_b32 s14, s37')
    a('  s_add_u32 s15, s37, 4096')
    a('  s_waitcnt lgkmcnt(0)')
    for t in range(4): stats_consts(a, ST + 4 * t)
    tmps = [68, 76, 84]; n = [0]
    def T():
        n[0] += 1; return tmps[n[0] % 3]
    for t in range(4):
        if O.stamps == 2: stamp(a, 16 + t)
        st = ST + 4 * t
        for p, so in ((0, 's14'), (1, 's15')):
            for b in (2 * p, 2 * p + 1, 5 + 2 * p, 6 + 2 * p): center(a, acc(b, t), CS + 4 * b, st)
            R = acc(2 * p, t)
            geglu(a, acc(2 * p, t), acc(5 + 2 * p, t), R, T(), st)
            geglu(a, acc(2 * p + 1, t), acc(6 + 2 * p, t), R + 2, T(), st)
            a(f'  buffer_store_dwordx4 {vr(R,4)}, v1, s[16:19], {so} offen offset:{t*1024}{HFF()}')
    for tp in range(2):
        if O.stamps == 2: stamp(a, 20 + tp)
        R = acc(4, 2 * tp)
        for t in (2 * tp, 2 * tp + 1):
            for b in (4, 9): center(a, acc(b, t), CS + 4 * b, ST + 4 * t)
        geglu(a, acc(4, 2 * tp), acc(9, 2 * tp), R, T(), ST + 8 * tp)
        geglu(a, acc(4, 2 * tp + 1), acc(9, 2 * tp + 1), R + 2, T(), ST + 8 * tp + 4)
        a(f'  buffer_store_dwordx4 {vr(R,4)}, v1, s[16:19], s35 offen offset:{tp*2048}{HFF()}')
    a('  s_waitcnt vmcnt(10)')
    a('  s_branch L_g2_entry')

def gen_dry_ret(a):
    if not O.dry: return
    a.label('L_dry_ret')
    a('  s_mov_b64 exec, -1')
    for r in range(8):
        a(f'  s_cmp_eq_u32 s39, {r}')
        a(f'  s_cbranch_scc1 L_dry_c{r}')
    a('  s_endpgm')

def g2_ids(a, kh, mt, nt, tile):
    if O.g2map == 0:
        a(f'''  s_and_b32 s3, s2, 7                    ; x
  s_lshr_b32 s16, s2, 3                  ; t
  s_and_b32 s{kh}, s3, 1
  s_lshr_b32 s17, s3, 1
  s_lshl_b32 s17, s17, 2
  s_and_b32 s18, s16, 3
  s_add_u32 s{mt}, s17, s18              ; mt
  s_lshr_b32 s{nt}, s16, 2               ; nt
  s_lshl_b32 s{tile}, s{mt}, 3
  s_add_u32 s{tile}, s{tile}, s{nt}''')
    else:
        a(f'''  s_and_b32 s3, s2, 7                    ; x
  s_lshr_b32 s16, s2, 3                  ; t
  s_and_b32 s{kh}, s16, 1
  s_lshr_b32 s16, s16, 1                 ; u
  s_lshr_b32 s17, s3, 1
  s_lshl_b32 s17, s17, 2
  s_and_b32 s18, s16, 3
  s_add_u32 s{mt}, s17, s18              ; mt = 4*(x>>1) + (u&3)
  s_and_b32 s17, s3, 1
  s_lshl_b32 s17, s17, 2
  s_lshr_b32 s18, s16, 2
  s_add_u32 s{nt}, s17, s18              ; nt = 4*(x&1) + (u>>2)
  s_lshl_b32 s{tile}, s{mt}, 3
  s_add_u32 s{tile}, s{tile}, s{nt}''')

def flag_srd(a, s):
    a(f'  s_add_u32 s{s}, s6, {WS_FLAG}')
    a(f'  s_addc_u32 s{s+1}, s7, 0')
    a(f'  s_mov_b32 s{s+2}, {XCC_OFF + 1024}')
    a(f'  s_mov_b32 s{s+3}, 0x20000')

def init_clear(a):
    a(f'''  s_lshl_b32 s12, s{S_MI}, 7
  s_lshl_b32 s13, s{S_NJ}, 2
  s_add_u32 s12, s12, s13
  s_add_u32 s12, s12, {FLAG_G1}''')
    flag_srd(a, 16)
    a(f'''  v_lshlrev_b32 v2, 10, v0
  v_add_u32 v2, s12, v2
  s_lshl_b32 s13, s2, 2
  s_add_u32 s13, s13, {XCC_OFF}
  s_getreg_b32 s14, hwreg(HW_REG_XCC_ID)
  s_and_b32 s14, s14, 15
  v_mov_b32 v3, s13
  v_mov_b32 v4, s14
  v_cmp_eq_u32 vcc, 2, v0
  v_cndmask_b32 v2, v2, v3, vcc
  v_mov_b32 v3, 0
  v_cndmask_b32 v3, v3, v4, vcc
  v_cmp_gt_u32 vcc, 3, v0
  s_and_saveexec_b64 s[20:21], vcc
  buffer_store_dword v3, v2, s[16:19], 0 offen sc1
  s_mov_b64 exec, s[20:21]''')

def init_check_issue(a):
    a(f"""  s_waitcnt lgkmcnt(0)
  s_mov_b32 s30, 256
  s_mov_b32 s31, 0x20000
  v_mov_b32 v2, 0
  buffer_load_dword v1, v2, s[28:31], 0 offen sc1""")

def init_check(a):
    a(f"""  s_mov_b32 s12, 0x40000
  v_mov_b32 v2, 0
L_ichk:
  v_readfirstlane_b32 s13, v1
  s_cmp_eq_u32 s13, 256
  s_cbranch_scc1 L_ichk_ok
  s_sub_u32 s12, s12, 1
  s_cmp_eq_u32 s12, 0
  s_cbranch_scc1 L_ichk_ok
  s_sleep 8
  buffer_load_dword v1, v2, s[28:31], 0 offen sc1
  s_waitcnt vmcnt(0)
  s_branch L_ichk
L_ichk_ok:""")

def OUTF(): return {0: '', 1: ' sc1', 2: ' nt', 3: ' sc0 sc1', 4: ' sc1 nt'}[O.outf]

def HFF(): return {0: ' sc1', 1: '', 2: ' nt', 3: ' sc0 sc1', 4: ' sc1 nt'}[O.hff]

def ATF(): return ' sc1' if O.atsc1 else ''

def px_clear(a, lbl, wadd):
    a(f'  s_cmp_eq_u32 s{S_CNT}, 6')
    a(f'  s_cbranch_scc0 {lbl}')
    g2_ids(a, 20, 21, 22, 23)
    a(f"""  s_lshl_b32 s16, s23, 16                ; tile*64K
  s_lshl_b32 s17, s20, 15
  s_add_u32 s16, s16, s17
  s_lshl_b32 s17, s{S_W}, 12
  s_add_u32 s16, s16, s17
  s_add_u32 s16, s16, {WS_PX + 4096 * wadd}
  s_add_u32 s16, s6, s16
  s_addc_u32 s17, s7, 0
  s_mov_b32 s18, 4096
  s_mov_b32 s19, 0x20000
  v_lshlrev_b32 v1, 4, v0
  v_mov_b32 v2, -1
  v_mov_b32 v3, -1
  v_mov_b32 v4, -1
  v_mov_b32 v5, -1""")
    for i in range(4):
        a(f'  buffer_store_dwordx4 v[2:5], v1, s[16:19], 0 offen offset:{i*1024} sc1')
    a.label(lbl)

def px_clear_setup(a):
    g2_ids(a, 20, 21, 22, 23)
    a(f"""  s_lshl_b32 s16, s23, 16                ; tile*64K
  s_lshl_b32 s17, s20, 15
  s_add_u32 s16, s16, s17
  s_lshl_b32 s17, s{S_W}, 12
  s_add_u32 s16, s16, s17
  s_add_u32 s16, s16, {WS_PX}
  s_add_u32 s88, s6, s16
  s_addc_u32 s89, s7, 0
  s_mov_b32 s90, {16384 + 4096}
  s_mov_b32 s91, 0x20000""")

def px_clear1(a, lbl, kk):
    a(f"""  s_sub_u32 s12, s{S_CNT}, 5
  s_cmp_le_u32 s12, 1
  s_cbranch_scc0 {lbl}
  s_sub_u32 s12, 6, s{S_CNT}
  s_lshl_b32 s12, s12, 14""")
    if kk == 0:
        a("""  v_mov_b32 v2, -1
  v_mov_b32 v3, -1
  v_mov_b32 v4, -1
  v_mov_b32 v5, -1""")
    a(f"""  v_lshlrev_b32 v1, 4, v0
  buffer_store_dwordx4 v[2:5], v1, s[88:91], s12 offen offset:{kk*1024} sc1""")
    a.label(lbl)

def init_count(a):
    a(f'''  s_load_dwordx2 s[16:17], s[0:1], 64
  v_mov_b32 v2, 0
  v_mov_b32 v3, 1
  s_waitcnt lgkmcnt(0)
  s_mov_b32 s18, 256
  s_mov_b32 s19, 0x20000
  v_cmp_eq_u32 vcc, 0, v0
  s_and_saveexec_b64 s[20:21], vcc
  buffer_atomic_add v3, v2, s[16:19], 0 offen{ATF()}
  s_mov_b64 exec, s[20:21]''')

G2_RED = 6 * 16384
class G2R:
    ACC = 8
    BF = 72
    AF = 136
    VB = 168
    VA = 176
    VD0, VD1 = 68, 69
    LD0, LD1 = 177, 178
    VO = 179
    XR = 180
    VL = 188
S_KH, S_MT, S_NT, S_TILE, S_G = 44, 45, 46, 47, 61

def g2acc(b, t): return G2R.ACC + (b * 2 + t) * 4

def g2_bvoff(a, d0, d1, nt, mw):
    a(f'''  v_lshrrev_b32 v3, 4, v0                ; 0..3
  v_lshlrev_b32 v4, 1, v3
  v_and_b32 v2, 15, v0
  v_xor_b32 v6, v4, v2
  v_xor_b32 v2, 8, v6
  s_lshl_b32 s17, s{mw}, 3
  v_add_u32 v3, s17, v3                  ; p
  v_lshlrev_b32 v3, 11, v3               ; p*2048
  s_lshl_b32 s17, s{nt}, 8
  v_add_u32 v3, s17, v3
  v_lshl_add_u32 v{d0}, v6, 4, v3
  v_lshl_add_u32 v{d1}, v2, 4, v3
  v_add_u32 v{d1}, 8192, v{d1}           ; + 4 rows''')

def g2_bstate(a):
    g2_ids(a, 20, 21, 22, 23)
    a(f'''  s_lshr_b32 s19, s76, 2                 ; group g
  s_mov_b32 s64, s24
  s_mov_b32 s65, s25
  s_mov_b32 s66, {1024*2048}
  s_mov_b32 s67, 0x20000
  s_lshl_b32 s16, s20, 4
  s_lshl_b32 s17, s19, 1
  s_add_u32 s16, s16, s17
  s_lshl_b32 s73, s16, 16
  s_mov_b32 s70, {4 << 16}
  s_mov_b32 s72, {1 << 16}
  s_mov_b32 s68, 4
  s_mov_b32 s69, 0
  s_mul_i32 s16, s20, 56                 ; 7 * 8kh
  s_mul_i32 s17, s19, 7
  s_add_u32 s18, s16, s17
  s_lshl_b32 s80, s18, 16
  s_mul_i32 s17, s19, 3
  s_add_u32 s18, s16, s17
  s_add_u32 s18, s18, 1
  s_lshl_b32 s81, s18, 16
  s_mul_i32 s17, s19, 14
  s_add_u32 s18, s16, s17
  s_add_u32 s18, s18, 6
  s_lshl_b32 s82, s18, 16
  s_mul_i32 s17, s19, 49152
  s_lshl_b32 s18, s{S_MW}, 11
  s_add_u32 s74, s17, s18''')
    g2_bvoff(a, G2R.VD0, G2R.VD1, 22, S_MW)

G2_LATE = False
_BL = [0]
def g2_dmaB(a, slot):
    R = G2R
    d0, d1 = (R.LD0, R.LD1) if G2_LATE else (R.VD0, R.VD1)
    _BL[0] += 1; n = _BL[0]
    a(f'  s_add_u32 m0, s74, {slot*16384}')
    a(f'  s_add_u32 s75, s73, s72')
    a(f'  buffer_load_dwordx4 v{d0}, s[64:67], s73 offen lds')
    a(f'  s_add_u32 m0, s74, {slot*16384 + 1024}')
    a(f'  s_sub_u32 s68, s68, 1')
    a(f'  buffer_load_dwordx4 v{d1}, s[64:67], s73 offen lds')
    a(f'  s_add_u32 m0, s74, {slot*16384 + 8192}')
    a(f'  s_add_u32 s73, s73, s70')
    if O.x_l2hit in (2, 3): a('  s_and_b32 s73, s73, 0x3ffff')
    a(f'  buffer_load_dwordx4 v{d0}, s[64:67], s75 offen lds')
    a(f'  s_add_u32 m0, s74, {slot*16384 + 8192 + 1024}')
    a(f'  s_cmp_eq_u32 s68, 0')
    a(f'  buffer_load_dwordx4 v{d1}, s[64:67], s75 offen lds')
    a(f'''  s_cbranch_scc0 L_bo{n}
  s_add_u32 s69, s69, 1
  s_mov_b32 s64, s26
  s_mov_b32 s65, s27
  s_mov_b32 s66, {3584*2048}
  s_mov_b32 s73, s80
  s_mov_b32 s70, {14 << 16}
  s_mov_b32 s72, {3 << 16}
  s_mov_b32 s68, 4
  s_cmp_eq_u32 s69, 1
  s_cbranch_scc1 L_bo{n}
  s_mov_b32 s73, s81
  s_mov_b32 s70, {7 << 16}
  s_mov_b32 s72, {1 << 16}
  s_mov_b32 s68, 8
  s_cmp_eq_u32 s69, 2
  s_cbranch_scc1 L_bo{n}
  s_mov_b32 s73, s82
  s_mov_b32 s70, {28 << 16}
  s_mov_b32 s72, {7 << 16}
  s_mov_b32 s68, 2
  s_cmp_eq_u32 s69, 3
  s_cbranch_scc1 L_bo{n}
  s_mov_b32 s66, 0
  s_mov_b32 s68, 64
L_bo{n}:''')

def g2_pf(a):
    _BL[0] += 1; n = _BL[0]
    a(f'''  v_and_b32 v192, s18, v191
  v_add_u32 v192, v192, v190
  s_sub_u32 s17, s17, 1
  buffer_load_dword v193, v192, s[20:23], s14 offen
  s_add_u32 s14, s14, s15
  s_cmp_eq_u32 s17, 0
  s_cbranch_scc0 L_pq{n}
  s_add_u32 s19, s19, 1
  s_mov_b32 s14, s81
  s_mov_b32 s15, {7 << 16}
  s_mov_b32 s18, {1 << 16}
  s_mov_b32 s17, 8
  s_cmp_eq_u32 s19, 2
  s_cbranch_scc1 L_pq{n}
  s_mov_b32 s14, s82
  s_mov_b32 s15, {28 << 16}
  s_mov_b32 s18, {7 << 16}
  s_mov_b32 s17, 2
  s_cmp_eq_u32 s19, 3
  s_cbranch_scc1 L_pq{n}
  s_mov_b32 s22, 0
  s_mov_b32 s17, 64
L_pq{n}:''')

def g2_pf_setup(a):
    a(f'''  s_mov_b32 s20, s26
  s_mov_b32 s21, s27
  s_mov_b32 s22, {3584*2048}
  s_mov_b32 s23, 0x20000
  s_mov_b32 s14, s80
  s_mov_b32 s15, {14 << 16}
  s_mov_b32 s18, {3 << 16}
  s_mov_b32 s17, 4
  s_mov_b32 s19, 1
  s_and_b32 s12, s76, 3
  s_lshl_b32 s12, s12, 3
  s_and_b32 s13, s{S_MT}, 3
  s_lshl_b32 s13, s13, 1
  s_add_u32 s12, s12, s13
  v_and_b32 v2, 1, v0
  v_add_u32 v2, s12, v2
  v_lshlrev_b32 v2, 11, v2
  v_bfe_u32 v3, v0, 1, 1
  v_lshl_add_u32 v2, v3, 7, v2
  s_lshl_b32 s12, s{S_NT}, 8
  v_add_u32 v2, s12, v2
  v_mov_b32 v3, 0x7ffffff0
  v_cmp_gt_u32 vcc, 8, v0
  v_cndmask_b32 v190, v3, v2, vcc
  v_bfe_u32 v3, v0, 2, 1
  v_sub_u32 v191, 0, v3
  v_cndmask_b32 v191, 0, v191, vcc''')

def g2_decode(a):
    R = G2R
    g2_ids(a, S_KH, S_MT, S_NT, S_TILE)
    a(f'''  s_lshr_b32 s{S_G}, s76, 2              ; group
  s_and_b32 s19, s76, 3                  ; mw''')
    g2_bvoff(a, R.LD0, R.LD1, S_NT, 19)
    a(f'''  ; A voffset = (mw&1)*2048 + lane*16
  s_and_b32 s17, s19, 1
  s_lshl_b32 s17, s17, 11
  v_lshlrev_b32 v{R.VL}, 4, v0
  v_add_u32 v{R.VA}, s17, v{R.VL}
  v_lshrrev_b32 v3, 2, v0
  v_and_b32 v4, 7, v3
  v_and_b32 v2, 3, v0
  v_lshlrev_b32 v2, 3, v2
  v_lshl_add_u32 v2, v3, 8, v2
  s_mul_i32 s17, s{S_G}, 49152
  v_add_u32 v2, s17, v2''')
    for b in range(8):
        a(f'  v_xor_b32 v6, {b}, v4')
        a(f'  v_lshl_add_u32 v{R.VB+b}, v6, 5, v2')
    a(f'''  ; output offset: token = mt*128 + 32mw + c (+16t) ; col bytes = nt*256 + g*128 + kh*64
  s_lshl_b32 s16, s{S_MT}, 7
  s_lshl_b32 s17, s19, 5
  s_add_u32 s16, s16, s17
  v_and_b32 v3, 15, v0
  v_add_u32 v3, s16, v3
  v_lshlrev_b32 v3, 11, v3               ; token*2048
  s_lshl_b32 s17, s{S_NT}, 8
  s_lshl_b32 s18, s{S_G}, 7
  s_add_u32 s17, s17, s18
  s_lshl_b32 s18, s{S_KH}, 6
  s_add_u32 s17, s17, s18
  v_add_u32 v{R.VO}, s17, v3
  s_lshl_b32 s16, s{S_MT}, 1
  s_bfe_u32 s17, s76, 0x10001            ; (w>>1)&1
  s_add_u32 s16, s16, s17
  s_mul_i32 s16, s16, {144*4096}
  s_add_u32 s16, s16, {WS_HF}
  s_add_u32 s40, s6, s16
  s_addc_u32 s41, s7, 0
  s_mul_i32 s60, s{S_KH}, {72*4096}
  s_add_u32 s42, s60, {72*4096}
  s_mov_b32 s43, 0x20000
  s_lshl_b32 s16, s{S_G}, 13
  s_add_u32 s60, s60, s16                ; A soffset
  s_lshl_b32 s16, s{S_TILE}, 7
  s_lshl_b32 s17, s{S_KH}, 2
  s_add_u32 s33, s16, s17
  s_lshl_b32 s71, s{S_G}, 1''')

def g2_loadA(a, buf):
    R = G2R
    a('  s_add_u32 s58, s60, 4096')
    for st in range(2):
        so = 's60' if st == 0 else 's58'
        for t in range(2):
            a(f'  buffer_load_dwordx4 {vr(R.AF+16*buf+8*st+4*t,4)}, v{R.VA}, s[40:43], {so} offen offset:{t*1024}{HFF()}')
    a('  s_add_u32 s60, s60, 16384')
    if O.x_l2hit in (1, 3): a('  s_and_b32 s60, s60, 0xffff')

def g2_readB(a, slot):
    R = G2R
    for st in range(2):
        for b in range(8):
            for s_ in range(2):
                a(f'  ds_read_b64_tr_b16 {vr(R.BF+32*st+4*b+2*s_,2)}, v{R.VB+b} offset:{slot*16384 + st*8192 + s_*4096}')

def g2_loadphase(a, rslot, abuf, dslot):
    loadphase(a, lambda t: g2_readB(t, rslot), [lambda t: g2_loadA(t, abuf), lambda t: g2_dmaB(t, dslot)] + ([g2_pf] if O.g2pf else []))

def G2W(): return 9 if O.g2pf else 8

def g2_fix(a, buf):
    R = G2R
    a(f'  s_cmp_ge_u32 s71, 64')
    a(f'  s_cbranch_scc0 3f')
    for st in range(2):
        r = R.AF + 16 * buf + 8 * st
        a(f'  v_swap_b32 v{r+2}, v{r+4}')
        a(f'  v_swap_b32 v{r+3}, v{r+5}')
    a('3:')
    a('  s_add_u32 s71, s71, 4')

def g2_mfmas(a, buf):
    R = G2R
    g2_fix(a, buf)
    if O.prio == 1: a('  s_setprio 0')
    if O.prio == 2: a('  s_setprio 1')
    al(a)
    for st in range(2):
        for b in range(8):
            for t in range(2):
                mfma(a, g2acc(b, t), R.BF + 32 * st + 4 * b, R.AF + 16 * buf + 8 * st + 4 * t)

def g2_residual(a):
    R = G2R
    a(f'''  v_lshrrev_b32 v4, 4, v0                ; g
  v_lshl_add_u32 v2, v4, 3, v{R.VO}      ; + g*8
  v_add_u32 v3, 32768, v2''')
    for t in range(2):
        for bb in range(2):
            a(f'  buffer_load_dwordx2 {vr(R.XR+4*t+2*bb,2)}, v{2+t}, s[48:51], 0 offen offset:{bb*32}')

def red_addr(a):
    R = G2R
    a(f'  s_and_b32 s16, s76, 3')
    a(f'  s_lshl_b32 s16, s16, 13                ; mw*8K')
    a(f'  s_add_u32 s16, s16, {G2_RED}')
    a(f'  v_add_u32 v3, s16, v{R.VL}')

def red_write(a, send, wr):
    for i in range(8):
        a(f'  ds_write_b128 v3, {vr(g2acc(send + i // 2, i % 2), 4)} offset:{wr + i*1024}')

def red_read(a, keep, rd):
    for i in range(8):
        a(f'  ds_read_b128 {vr(104 + 4*i, 4)}, v3 offset:{rd + i*1024}')
    for i in range(8):
        a(f'  s_waitcnt lgkmcnt({7-i})')
        src = g2acc(keep + i // 2, i % 2)
        for q in range(4):
            a(f'  v_add_f32 v{72 + 4*i + q}, v{src + q}, v{104 + 4*i + q}')

def poll(a, lbl, srd_, voff, want_mask_all=True):
    a(f'''L_{lbl}:
  buffer_load_dword v3, v{voff}, s[{srd_}:{srd_+3}], 0 offen sc1
  s_waitcnt vmcnt(0)
  v_cmp_eq_u32 vcc, 1, v3
  s_cmp_eq_u64 vcc, exec
  s_cbranch_scc1 L_{lbl}_ok
  s_sub_u32 s62, s62, 1
  s_cmp_eq_u32 s62, 0
  s_cbranch_scc1 L_{lbl}_ok
  s_sleep 1
  s_branch L_{lbl}
L_{lbl}_ok:''')

def px_send(a, base, lbl):
    R = G2R
    a('  s_cmp_eq_u32 s83, 1')
    a(f'  s_cbranch_scc1 {lbl}')
    for i in range(4):
        a(f'  buffer_store_dwordx4 {vr(base + 4*i, 4)}, v{R.VL}, s[40:43], s60 offen offset:{i*1024} sc1')
    a(f'  s_branch {lbl}_d')
    a.label(lbl)
    for i in range(4):
        a(f'  buffer_store_dwordx4 {vr(base + 4*i, 4)}, v{R.VL}, s[40:43], s60 offen offset:{i*1024}')
    a.label(f'{lbl}_d')

def gen_g2(a):
    global G2_LATE
    G2_LATE = True
    R = G2R
    a.label('L_g2_entry')
    stamp(a, 4)
    if O.earlyE:
        a('  s_cmp_lt_u32 s76, 4')
        a('  s_cbranch_scc1 L_g2_e0')
        a('  s_barrier')
        a('L_g2_e0:')
    a('''  s_load_dwordx2 s[4:5], s[0:1], 0       ; x
  s_load_dwordx4 s[8:11], s[0:1], 56''')
    g2_decode(a)
    if O.yzero:
        a('  s_cmp_ge_u32 s76, 4')
        a('  s_cbranch_scc1 L_g2_nz')
    for r in range(R.ACC, R.ACC + 64):
        a(f'  v_mov_b32 v{r}, 0')
    if O.yzero: a('L_g2_nz:')
    a('  s_waitcnt lgkmcnt(0)')
    srd(a, 48, 4, 5, 2048 * 2048)
    srd(a, 52, 8, 9, 2048 * 2048)
    flag_srd(a, 28)
    a(f'''  ; flags of the 16 producers of my K half: all done at v189, o done at v189 + 1024
  s_lshr_b32 s16, s{S_MT}, 1
  s_lshl_b32 s16, s16, 7
  s_lshl_b32 s17, s{S_KH}, 6
  s_add_u32 s16, s16, s17
  s_add_u32 s16, s16, {FLAG_G1}
  v_and_b32 v4, 15, v0
  v_lshlrev_b32 v4, 2, v4
  v_add_u32 v189, s16, v4''')
    if O.g2pf: g2_pf_setup(a)
    a(f'''  s_cmp_lg_u32 s76, 0
  s_cbranch_scc1 L_g2_go
  s_mov_b32 s62, 0x40000
  v_add_u32 v4, 1024, v189''')
    poll(a, 'g2_p1', 28, 4)
    a.label('L_g2_go')
    if O.earlyE:
        a('  s_cmp_ge_u32 s76, 4')
        a('  s_cbranch_scc1 L_g2_e1')
        a('  s_barrier')
        a('L_g2_e1:')
    else:
        a('  s_barrier')
    stamp(a, 6)
    g2_loadA(a, 0)
    a(f'''  v_mov_b32 v4, {XF_L}
  ds_read_b32 v2, v4
  s_waitcnt lgkmcnt(0)
  v_readfirstlane_b32 s83, v2''')
    a(f'  s_cmp_eq_u32 s{S_G}, 0')
    a(f'  s_cbranch_scc0 L_g2_Y')
    g2_loadphase(a, 0, 1, 2)
    a(f'  s_waitcnt vmcnt({G2W()}) lgkmcnt(0)')
    a('  s_barrier')
    stamp(a, 7)
    a('  s_mov_b32 s57, 3')
    (a(f'  .p2align {O.alignl}') if O.alignl else None); a.label('L_g2_xl')
    for q in range(6):
        g2_mfmas(a, q % 2)
        a('  s_barrier')
        if q == 5:
            a('  s_cmp_eq_u32 s57, 1')
            a('  s_cbranch_scc1 L_g2_xlast')
        if q == 1:
            a(f'''  s_cmp_eq_u32 s57, 3
  s_cbranch_scc0 L_g2_nc1
  s_cmp_eq_u32 s76, 0
  s_cbranch_scc0 L_g2_nc1
  buffer_load_dword v3, v189, s[28:31], 0 offen sc1
L_g2_nc1:''')
        g2_loadphase(a, (q + 1) % 3, q % 2, q % 3)
        a(f'  s_waitcnt vmcnt({G2W()}) lgkmcnt(0)')
        if q == 1:
            a(f'''  s_cmp_eq_u32 s57, 3
  s_cbranch_scc0 L_g2_nc2
  s_cmp_eq_u32 s76, 0
  s_cbranch_scc0 L_g2_nc2
  v_cmp_eq_u32 vcc, 1, v3
  s_cmp_eq_u64 vcc, exec
  s_cbranch_scc1 L_g2_nc2
  s_mov_b32 s62, 0x40000''')
            poll(a, 'g2_p3', 28, 189)
            a('L_g2_nc2:')
        a('  s_barrier')
    a(f'  s_sub_u32 s57, s57, 1')
    a(f'  s_branch L_g2_xl')
    a.label('L_g2_xlast')
    stamp(a, 8)
    g2_residual(a)
    red_addr(a)
    red_write(a, send=4, wr=0)
    a('  s_waitcnt lgkmcnt(0)')
    a('  s_barrier')
    red_read(a, keep=0, rd=32768)
    a(f'  s_branch L_g2_x')
    a.label('L_g2_Y')
    a('  s_waitcnt vmcnt(4)')
    a('  s_barrier')
    stamp(a, 7)
    if O.yzero:
        for r in range(R.ACC, R.ACC + 64):
            a(f'  v_mov_b32 v{r}, 0')
    a('  s_mov_b32 s57, 3')
    (a(f'  .p2align {O.alignl}') if O.alignl else None); a.label('L_g2_yl')
    for q in range(6):
        if q == 5:
            a('  s_cmp_eq_u32 s57, 1')
            a('  s_cbranch_scc1 L_g2_ylast')
        g2_loadphase(a, q % 3, (q + 1) % 2, (q + 2) % 3)
        if q == 0:
            a(f'''  s_cmp_eq_u32 s57, 3
  s_cbranch_scc0 L_g2_nf
  s_cmp_eq_u32 s76, 4
  s_cbranch_scc0 L_g2_nf
  s_lshl_b32 s12, s{S_MI}, 7
  s_lshl_b32 s13, s{S_NJ}, 2
  s_add_u32 s12, s12, s13
  s_add_u32 s12, s12, {FLAG_G1}
  v_mov_b32 v2, s12
  v_mov_b32 v3, 1
  s_mov_b64 exec, 1
  buffer_store_dword v3, v2, s[28:31], 0 offen sc1
  s_mov_b64 exec, -1
L_g2_nf:''')
        a(f'  s_waitcnt vmcnt({G2W()}) lgkmcnt(0)')
        a('  s_barrier')
        g2_mfmas(a, q % 2)
        a('  s_barrier')
    a(f'  s_sub_u32 s57, s57, 1')
    a(f'  s_branch L_g2_yl')
    a.label('L_g2_ylast')
    g2_readB(a, 17 % 3)
    g2_residual(a)
    red_addr(a)
    a('  s_waitcnt vmcnt(4) lgkmcnt(0)')
    a('  s_barrier')
    g2_fix(a, 1)
    for st in range(2):
        for b in range(4):
            for t in range(2):
                mfma(a, g2acc(b, t), R.BF + 32 * st + 4 * b, R.AF + 16 + 8 * st + 4 * t)
    k = 0
    for st in range(2):
        for b in range(4, 8):
            for t in range(2):
                mfma(a, g2acc(b, t), R.BF + 32 * st + 4 * b, R.AF + 16 + 8 * st + 4 * t)
                k += 1
                if 4 <= k < 12:
                    i = k - 4
                    a(f'  ds_write_b128 v3, {vr(g2acc(i // 2, i % 2), 4)} offset:{32768 + i*1024}')
    stamp(a, 8)
    a('  s_waitcnt lgkmcnt(0)')
    a('  s_barrier')
    red_read(a, keep=4, rd=0)
    a.label('L_g2_x')
    sched_from = len(a.l)
    a(f'''  s_lshl_b32 s16, s{S_TILE}, 16          ; tile*64K
  s_add_u32 s16, s16, {WS_PX}
  s_add_u32 s40, s6, s16
  s_addc_u32 s41, s7, 0
  s_mov_b32 s42, 65536
  s_mov_b32 s43, 0x20000
  s_xor_b32 s16, s{S_KH}, 1
  s_lshl_b32 s16, s16, 15
  s_lshl_b32 s17, s76, 12
  s_add_u32 s60, s16, s17
  s_lshl_b32 s16, s{S_KH}, 15
  s_add_u32 s63, s16, s17
  s_cmp_eq_u32 s{S_KH}, 0
  s_cbranch_scc0 L_g2_s1''')
    px_send(a, 88, 'L_g2_pa')
    for i in range(16):
        a(f'  v_mov_b32 v{8 + i}, v{72 + i}')
    a(f'  s_branch L_g2_s2')
    a.label('L_g2_s1')
    px_send(a, 72, 'L_g2_pb')
    for i in range(16):
        a(f'  v_mov_b32 v{8 + i}, v{88 + i}')
    a.label('L_g2_s2')
    stamp(a, 9)
    a(f'''  v_lshrrev_b32 v4, 4, v0
  v_and_b32 v5, 1, v4
  v_lshlrev_b32 v5, 5, v5
  v_lshrrev_b32 v4, 1, v4
  v_lshl_add_u32 v5, v4, 4, v5
  v_add_u32 v5, v{R.VO}, v5
  v_add_u32 v6, 32768, v5
  s_waitcnt vmcnt(4)''')
    for i in range(4):
        bb, t = i // 2, i % 2
        xr = R.XR + 4 * t + 2 * bb
        a(f'  v_lshlrev_b32 v40, 16, v{xr}')
        a(f'  v_and_b32 v41, 0xffff0000, v{xr}')
        a(f'  v_lshlrev_b32 v42, 16, v{xr+1}')
        a(f'  v_and_b32 v43, 0xffff0000, v{xr+1}')
        for q in range(4):
            a(f'  v_add_f32 v{8+4*i+q}, v{8+4*i+q}, v{40+q}')
    a('  s_mov_b32 s62, 0x40000')
    a.label('L_g2_rx')
    for i in range(4):
        a(f'  buffer_load_dwordx4 {vr(24 + 4*i, 4)}, v{R.VL}, s[40:43], s63 offen offset:{i*1024} sc1')
    a('  s_waitcnt vmcnt(0)')
    a('  v_max3_u32 v40, v24, v25, v26')
    for i in range(27, 39, 2):
        a(f'  v_max3_u32 v40, v40, v{i}, v{i+1}')
    a('  v_max_u32 v40, v40, v39')
    a('''  v_cmp_eq_u32 vcc, -1, v40
  s_cmp_eq_u64 vcc, 0
  s_cbranch_scc1 L_g2_rxok
  s_sub_u32 s62, s62, 1
  s_cmp_eq_u32 s62, 0
  s_cbranch_scc1 L_g2_rxok
  s_sleep 1
  s_branch L_g2_rx
L_g2_rxok:''')
    stamp(a, 10)
    for i in range(4):
        bb, t = i // 2, i % 2
        for q in range(4):
            a(f'  v_add_f32 v{8+4*i+q}, v{8+4*i+q}, v{24+4*i+q}')
        d = 44 + 4 * t + 2 * bb
        a(f'  v_cvt_pk_bf16_f32 v{d}, v{8+4*i}, v{8+4*i+1}')
        a(f'  v_cvt_pk_bf16_f32 v{d+1}, v{8+4*i+2}, v{8+4*i+3}')
    for t in range(2):
        r = 44 + 4 * t
        a(f'  v_permlane16_swap_b32 v{r}, v{r+2}')
        a(f'  v_permlane16_swap_b32 v{r+1}, v{r+3}')
        a(f'  buffer_store_dwordx4 {vr(r,4)}, v{5+t}, s[52:55], 0 offen{OUTF()}')
    if O.sched >= 2: a.l[sched_from:] = sched.sched(a.l[sched_from:])
    stamp(a, 11)
    stamp_real(a, 63)
    stamp_flush(a)
    a('  s_endpgm')
    a.label('L_code_end')

def gen_main(a, name):
    kernel_head(a, name)
    a(f'''  s_cmp_ge_u32 s2, 256
  s_cbranch_scc1 L_main_end
  s_load_dwordx2 s[84:85], s[0:1], 48    ; wd
  s_load_dwordx2 s[86:87], s[0:1], 16    ; wo
  s_load_dwordx2 s[36:37], s[0:1], 0     ; x
  s_load_dwordx2 s[4:5], s[0:1], 8       ; wqkv
  s_load_dwordx4 s[8:11], s[0:1], 32
  s_load_dwordx2 s[6:7], s[0:1], 72      ; ws''')
    if O.stamps:
        a('  v_mov_b32 v7, 0')
        stamp_real(a, 62)
        stamp(a, 0)
    a(f'''  v_lshrrev_b32 v1, 6, v0
  v_and_b32 v0, 63, v0                   ; lane
  v_readfirstlane_b32 s{S_W}, v1
  s_waitcnt lgkmcnt(0)''')
    stats_loads(a)
    a(f'''  s_and_b32 s3, s2, 7
  s_lshr_b32 s12, s2, 3
  s_and_b32 s13, s12, 3
  s_lshl_b32 s3, s3, 2
  s_add_u32 s{S_NJ}, s3, s13
  s_lshr_b32 s{S_MI}, s12, 2             ; mi = t>>2
  s_and_b32 s{S_MW}, s{S_W}, 3
  s_lshl_b32 s24, s{S_NJ}, 6
  s_lshr_b32 s12, s{S_NJ}, 1
  s_and_b32 s13, s{S_NJ}, 1
  s_mul_i32 s12, s12, 448                ; 14a*32 bytes
  s_mul_i32 s14, s13, 192
  s_add_u32 s25, s12, s14                ; chunks 0..11
  s_lshl_b32 s14, s13, 5
  s_add_u32 s26, s12, s14
  s_add_u32 s26, s26, {12*32 - 12*16}
  s_cmp_ge_u32 s{S_W}, 4
  s_cbranch_scc1 L_ysetup
  v_and_b32 v2, 15, v0                   ; c
  v_lshrrev_b32 v3, 4, v0                ; g
  v_lshrrev_b32 v4, 1, v2
  v_xor_b32 v3, v3, v4                   ; g ^ (c>>1)
  v_lshlrev_b32 v3, 4, v3
  v_lshl_add_u32 v2, v2, 7, v3           ; c*128 + chunk*16
  s_lshl_b32 s12, s{S_MW}, 13
  v_add_u32 v{V_A0}, s12, v2
  v_xor_b32 v{V_A1}, 64, v{V_A0}
  v_add_u32 v{V_H0}, 32768, v2
  v_xor_b32 v{V_H1}, 64, v{V_H0}
  v_lshrrev_b32 v3, 2, v0                ; 4g + r
  v_and_b32 v4, 3, v0                    ; cq
  v_lshlrev_b32 v4, 3, v4                ; cq*8
  v_mul_u32_u24 v5, 224, v3
  v_add_u32 v5, v5, v4
  v_add_u32 v{V_G0}, {OFF_G}, v5
  v_add_u32 v{V_G1}, {2*STAGE}, v{V_G0}
  v_mul_u32_u24 v5, 192, v3
  v_add_u32 v5, v5, v4
  v_add_u32 v5, {OFF_Q}, v5
  v_bfe_u32 v6, v0, 4, 1                 ; g&1
  v_lshlrev_b32 v6, 5, v6                ; (g&1)*32
  v_add_u32 v{V_QE0}, v5, v6
  v_sub_u32 v{V_QO0}, v5, v6
  v_add_u32 v{V_QE1}, {2*STAGE}, v{V_QE0}
  v_add_u32 v{V_QO1}, {2*STAGE}, v{V_QO0}
  s_waitcnt lgkmcnt(0)
  s_cmp_eq_u32 s{S_MW}, 0
  s_cbranch_scc1 L_X0
  s_cmp_eq_u32 s{S_MW}, 1
  s_cbranch_scc1 L_X1
  s_cmp_eq_u32 s{S_MW}, 2
  s_cbranch_scc1 L_X2
  s_branch L_X3
L_main_end:
  s_endpgm
L_ysetup:
  v_and_b32 v2, 15, v0                   ; c
  v_lshrrev_b32 v3, 4, v0                ; g
  v_lshrrev_b32 v4, 1, v2
  v_xor_b32 v3, v3, v4                   ; g ^ (c>>1)
  v_lshlrev_b32 v3, 4, v3
  v_lshl_add_u32 v2, v2, 7, v3           ; c*128 + chunk*16
  s_lshl_b32 s12, s{S_MW}, 13
  v_add_u32 v{V_A0}, s12, v2
  v_xor_b32 v{V_A1}, 64, v{V_A0}
  v_add_u32 v{V_H0}, 32768, v2
  v_xor_b32 v{V_H1}, 64, v{V_H0}
  v_lshrrev_b32 v3, 2, v0                ; 4g + r
  v_and_b32 v4, 3, v0                    ; cq
  v_lshlrev_b32 v4, 3, v4                ; cq*8
  v_mul_u32_u24 v5, 224, v3
  v_add_u32 v5, v5, v4
  v_add_u32 v{V_G0}, {OFF_G}, v5
  v_add_u32 v{V_G1}, {2*STAGE}, v{V_G0}
  s_waitcnt lgkmcnt(0)''')
    srd(a, S_SRD, A_PTR, A_PTR + 1, 4 << 20, A_OFF)
    a(f'''  s_mov_b32 s{S_SOFF}, 0
  s_lshl_b32 s12, s{S_MI}, 8
  s_lshl_b32 s13, s{S_MW}, 6
  s_add_u32 s13, s13, s12
  v_lshrrev_b32 v1, 3, v0                ; r
  v_and_b32 v2, 7, v0
  v_lshrrev_b32 v3, 1, v1
  v_xor_b32 v3, v2, v3
  v_add_u32 v4, s13, v1
  v_lshlrev_b32 v4, 11, v4
  v_lshl_add_u32 v{V_OFF}, v3, 4, v4
  v_xor_b32 v{V_OFF+1}, 64, v{V_OFF}
  s_lshl_b32 s{S_LDS}, s{S_MW}, 13
  s_lshl_b32 s13, s{S_MW}, 2
  v_add_u32 v1, s13, v1                  ; hr
  v_lshrrev_b32 v3, 1, v1
  v_and_b32 v3, 7, v3
  v_xor_b32 v3, v2, v3
  s_sub_u32 s12, s12, 16
  v_add_u32 v4, s12, v1
  v_max_i32 v4, 0, v4
  v_lshlrev_b32 v4, 11, v4
  v_lshl_add_u32 v{V_OFF+2}, v3, 4, v4
  s_lshl_b32 s13, s{S_MW}, 9
  s_add_u32 s{S_LDS+1}, s13, 32768
  s_mov_b32 s13, 0xffff0000
  s_cmp_eq_u32 s{S_MW}, 0
  s_cselect_b32 s62, s13, -1
  s_mov_b32 s63, 0''')
    ypf_setup(a)
    a('  s_branch L_Y')
    for mw in range(4): gen_x(a, mw)
    gen_y(a)
    gen_xepi(a)
    gen_yepi(a)
    gen_dry_ret(a)
    gen_g2(a)

KN = 'parallel_sum__sliding_local_dilated__geglu_ffn__prompt_kernel'
def gen_all():
    a = Asm()
    a(HEADER.rstrip('\n'))
    a(f'; @launch grid=(256,1,1) block=(512,1,1) lds={MAIN_LDS}')
    a(''';
; launch, and one arrival counter in d_debug[0] that tells when all of them have been cleared.''')
    a('.amdgcn_target "amdgcn-amd-amdhsa--gfx950"')
    a('.text')
    KN_ = KN
    gen_main(a, KN_)
    a('.section .rodata,"a"')
    kernel_desc(a, KN_, vgpr=256, sgpr=100)
    return hazard.fix(a.text(), verbose=False)

if __name__ == '__main__':
    for kv in sys.argv[1:]:
        k, v = kv.split('=')
        setattr(O, k, int(v) if v.lstrip('-').isdigit() else v)
    sys.stdout.write(gen_all())
```
